```python
import torch

def _softmax(x, axis=-1):
    return torch.softmax(x, dim=axis)
def _gelu(x):
    return torch.nn.functional.gelu(x, approximate="tanh")
def _silu(x):
    return torch.nn.functional.silu(x)
def _sigmoid(x):
    return torch.sigmoid(x)
def _layernorm(x, axis=-1, eps=1e-5):
    m = x.mean(dim=axis, keepdim=True)
    v = x.var(dim=axis, keepdim=True, unbiased=False)
    return (x - m) / torch.sqrt(v + eps)
def _scatter_add(tgt, idx, src, axis=0):
    return tgt.clone().index_add_(axis, idx, src)
def _segment_sum(src, seg, n):
    out = torch.zeros((n,) + src.shape[1:], dtype=src.dtype)
    return out.index_add_(0, seg, src)
def _pad(x, pw):
    flat = tuple(v for pair in reversed(pw) for v in pair)
    return torch.nn.functional.pad(x, flat)

kernel_name = 'sequential_preLN__linear_attn_block__mixer_token_mlp__prompt'

def setup_inputs():

    _w = (lambda a: (lambda t: t.to(torch.bfloat16) if t.is_floating_point() else t)(torch.as_tensor(a)))
    def _A_setup():
        B, S, D = 1, 2048, 576
        return {
            "x": _w((lambda *s: torch.randn(*s, dtype=torch.bfloat16) * 0.05)(B, S, D)),
            "wqkv": _w((lambda *s: torch.randn(*s, dtype=torch.bfloat16) * 0.05)(D, 3 * D)),
            "wo": _w((lambda *s: torch.randn(*s, dtype=torch.bfloat16) * 0.05)(D, D)),
        }
    _A_in = _A_setup()

    def _B_setup():
        B, S, D, F = 1, 2048, 576, 4608
        return {
            "x": _w((lambda *s: torch.randn(*s, dtype=torch.bfloat16) * 0.05)(B, S, D)),
            "w1": _w((lambda *s: torch.randn(*s, dtype=torch.bfloat16) * 0.2)(S, F) * (S ** -0.5)),
            "b1": _w((lambda *s: torch.randn(*s, dtype=torch.bfloat16) * 3.2)(F) * 0.02),
            "w2": _w((lambda *s: torch.randn(*s, dtype=torch.bfloat16) * 0.2)(F, S) * (F ** -0.5)),
            "b2": _w((lambda *s: torch.randn(*s, dtype=torch.bfloat16) * 0.4)(S) * 0.02),
        }
    _B_in = _B_setup()

    return {
        "A_x": _A_in["x"],
        "A_wqkv": _A_in["wqkv"],
        "A_wo": _A_in["wo"],
        "B_x": _B_in["x"],
        "B_w1": _B_in["w1"],
        "B_b1": _B_in["b1"],
        "B_w2": _B_in["w2"],
        "B_b2": _B_in["b2"],
    }

def reference(A_x, A_wqkv, A_wo, B_x, B_w1, B_b1, B_w2, B_b2):
    def _A_ref(x, wqkv, wo):
        B, S, D = x.shape
        H = 32; Dh = D // H
        qkv = (lambda x, *d: x.permute(*d))((x @ wqkv).reshape(B, S, 3, H, Dh), 2, 0, 3, 1, 4)
        q, k, v = qkv[0], qkv[1], qkv[2]
        phi = lambda t: torch.where(t > 0, t + 1, torch.exp(t)) + 1e-6
        pq, pk = phi(q), phi(k)
        kv = torch.einsum("bhsd,bhse->bhde", pk, v)
        z = torch.einsum("bhsd->bhd", pk)
        num = torch.einsum("bhqd,bhde->bhqe", pq, kv)
        den = torch.einsum("bhqd,bhd->bhq", pq, z)[..., None] + 1e-6
        o = num / den
        return (lambda x, *d: x.permute(*d))(o, 0, 2, 1, 3).reshape(B, S, D) @ wo

    def _B_ref(x, w1, b1, w2, b2):
        B, S, D = x.shape
        h = _layernorm(x, axis=-1)
        u = torch.einsum("bsd,sf->bdf", h, w1) + b1
        u = _gelu(u)
        y = torch.einsum("bdf,fs->bds", u, w2) + b2
        return (lambda x, *d: x.permute(*d))(y, 0, 2, 1)

    x = A_x
    h = x + _A_ref(_layernorm(x, axis=-1), A_wqkv, A_wo)
    h2 = h + _B_ref(_layernorm(h, axis=-1), B_w1, B_b1, B_w2, B_b2)
    return h2
```

```python
def v(i, n=1):
    return f"v{i}" if n == 1 else f"v[{i}:{i+n-1}]"
def a(i, n=1):
    return f"a{i}" if n == 1 else f"a[{i}:{i+n-1}]"
def s(i, n=1):
    return f"s{i}" if n == 1 else f"s[{i}:{i+n-1}]"

class Alloc:
    def __init__(self, start=0, limit=256):
        self.p = start; self.limit = limit; self.hi = start
    def get(self, n=1, align=1):
        if n > 1 and align < 2: align = 2
        self.p = (self.p + align - 1) // align * align
        r = self.p; self.p += n
        assert self.p <= self.limit, f"out of regs {self.p}"
        self.hi = max(self.hi, self.p)
        return r
    def mark(self): return self.p
    def release(self, m): self.p = m

class Asm:
    GID = [0]
    def __init__(self):
        self.L = []
        Asm.GID[0] += 1
        self.uid = 1000*Asm.GID[0]
    def __call__(self, t):
        for ln in t.split("\n"):
            ln = ln.strip()
            if not ln: continue
            self.L.append(ln if ln.endswith(":") else "  " + ln)
    def label(self, base):
        self.uid += 1
        return f"L_{base}_{self.uid}"
    def text(self):
        return "\n".join(self.L) + "\n"
    def srd(self, d, base, nbytes):
        self(f"s_mov_b32 {s(d)}, {s(base)}\ns_mov_b32 {s(d+1)}, {s(base+1)}\ns_mov_b32 {s(d+2)}, {nbytes}\ns_mov_b32 {s(d+3)}, 0x20000")
    def srd_off(self, d, base, off, nbytes):
        self(f"s_add_u32 {s(d)}, {s(base)}, {off}\ns_addc_u32 {s(d+1)}, {s(base+1)}, 0\ns_mov_b32 {s(d+2)}, {nbytes}\ns_mov_b32 {s(d+3)}, 0x20000")

def interleave(primary, fillers):
    out = []
    n, m = len(primary), len(fillers)
    j = 0
    for i, p in enumerate(primary):
        out.append(p)
        tgt = ((i + 1) * m + n - 1) // n
        while j < min(tgt, m):
            out.append(fillers[j]); j += 1
    out += fillers[j:]
    return out

def kernel_header(name):
    return f".globl {name}\n.p2align 8\n.type {name},@function\n{name}:\n"

def kernel_desc(name, nv, ns=102, acc=None):
    off = (nv + 3) // 4 * 4
    tot = off + acc if acc else nv
    return f""".p2align 6
.amdhsa_kernel {name}
  .amdhsa_next_free_vgpr {tot}
  .amdhsa_next_free_sgpr {ns}
  .amdhsa_accum_offset {off}
  .amdhsa_group_segment_fixed_size 0
  .amdhsa_kernarg_size 88
  .amdhsa_user_sgpr_count 2
  .amdhsa_user_sgpr_kernarg_segment_ptr 1
  .amdhsa_system_sgpr_workgroup_id_x 1
  .amdhsa_float_denorm_mode_32 3
.end_amdhsa_kernel
"""
def f2u(x):
    import struct
    return struct.unpack("<I", struct.pack("<f", x))[0]
def fhex(x):
    return "0x%08x" % f2u(x)
```

```python
from asmlib import *
from haz import hazfix
import math
S_, D_, F_, H_, DH = 2048, 576, 4608, 32, 18
KA_X, KA_WQKV, KA_WO, KA_BX, KA_W1, KA_B1, KA_W2, KA_B2, KA_OUT, KA_DBG, KA_WS = [8*i for i in range(11)]
SZ_SD = S_*D_*2
WS_PQ   = 0
WS_H    = WS_PQ + SZ_SD
WS_HP   = WS_H + SZ_SD
WS_U    = WS_HP + SZ_SD
SZ_U    = D_*F_*2
WS_KV   = WS_U + SZ_U
SZ_KV   = 65536
WS_ST   = WS_KV + SZ_KV
SZ_ST   = 1<<17
WS_MS   = WS_ST + SZ_ST
SZ_MS   = 16384
WS_PART = WS_MS + SZ_MS
SZ_PART = 16<<20
WS_PROF = WS_PART + SZ_PART
SZ_PROF = 1<<20
WS_END  = WS_PROF + SZ_PROF

class Prof:
    def __init__(self, A, on, kidx, sbase, nmax=8):
        self.A, self.on, self.kidx, self.sb, self.n = A, on, kidx, sbase, 0
        self.nmax = nmax
    def stamp(self):
        if not self.on: return
        assert self.n < self.nmax
        self.A(f"s_memrealtime {s(self.sb+2*self.n,2)}")
        self.n += 1
    def flush(self, ws_s, vtmp, wave_s=None, wave_expr=None, wave_s2=None):
        if not self.on: return
        A = self.A
        A("s_waitcnt lgkmcnt(0)")
        if wave_expr: A(wave_expr); wave_s = wave_s2
        for i in range(8):
            src = s(self.sb+2*i) if i < self.n else "0"
            A(f"v_mov_b32 {v(vtmp+i)}, {src}")
        A(f"s_mov_b64 exec, 1")
        A(f"s_lshl_b32 {s(self.sb)}, s2, 3")
        if wave_s is not None: A(f"s_add_u32 {s(self.sb)}, {s(self.sb)}, {s(wave_s)}")
        A(f"s_lshl_b32 {s(self.sb)}, {s(self.sb)}, 5")
        A(f"s_add_u32 {s(self.sb)}, {s(self.sb)}, {WS_PROF + self.kidx*131072}")
        A(f"v_mov_b32 {v(vtmp+8)}, {s(self.sb)}")
        A.srd(96, ws_s, WS_END)
        A(f"buffer_store_dwordx4 {v(vtmp,4)}, {v(vtmp+8)}, s[96:99], 0 offen")
        A(f"buffer_store_dwordx4 {v(vtmp+4,4)}, {v(vtmp+8)}, s[96:99], 0 offen offset:16")

GELU_C1 = -2.0*math.sqrt(2.0/math.pi)*math.log2(math.e)
GELU_C2 = GELU_C1*0.044715

def assemble_file(parts):
    head = "\n".join(p[2] for p in parts)
    seen = set(); body = ""; descs = ""
    for t, d, l in parts:
        if d in seen: continue
        seen.add(d); body += hazfix(t)[0]; descs += d
    return head + '\n.amdgcn_target "amdgcn-amd-amdhsa--gfx950"\n.text\n' + body + '.section .rodata,"a"\n' + descs


LOG2E = math.log2(math.e)
LN2 = math.log(2.0)
KV_HEAD = 1600
def front(prim, fill, k):
    out = []; j = 0
    for p in prim:
        out.append(p)
        out += fill[j:j+k]; j += k
    return out + fill[j:]
def set_exec(A, mask):
    lo, hi = mask & 0xffffffff, mask >> 32
    if mask == (1 << 64) - 1: A("s_mov_b64 exec, -1")
    else: A(f"s_mov_b32 exec_lo, 0x{lo:x}\ns_mov_b32 exec_hi, 0x{hi:x}")
```

```python
import re
TRANS = ("v_exp_f32", "v_log_f32", "v_rcp_f32", "v_rsq_f32", "v_sqrt_f32", "v_sin_f32", "v_cos_f32")
def regs(tok):
    tok = tok.strip().lstrip('-').strip('|')
    m = re.fullmatch(r"([vsa])(\d+)", tok)
    if m: return {(m[1], int(m[2]))}
    m = re.fullmatch(r"([vsa])\[(\d+):(\d+)\]", tok)
    if m: return {(m[1], i) for i in range(int(m[2]), int(m[3])+1)}
    if tok == "vcc": return {('s', 106), ('s', 107)}
    if tok == "vcc_lo": return {('s', 106)}
    if tok == "vcc_hi": return {('s', 107)}
    if tok == "m0": return {('s', 124)}
    if tok == "exec": return {('s', 126), ('s', 127)}
    if tok == "exec_lo": return {('s', 126)}
    if tok == "exec_hi": return {('s', 127)}
    return set()
class I:
    def __init__(self, line):
        self.line = line
        t = line.split(';')[0].strip()
        self.label = t[:-1] if t.endswith(':') else None
        self.dir = t.startswith('.') or not t
        self.op = ""; self.ops = []; self.cls = None
        self.wr = set(); self.rd = set(); self.A = self.B = self.C = set(); self.data = set()
        self.states = 0; self.target = None; self.uncond = False
        if self.label or self.dir: return
        p = t.split(None, 1); self.op = op = p[0]
        rest = p[1] if len(p) > 1 else ""
        toks = [x.strip() for x in rest.split(',')]
        last = toks[-1].split() if toks and toks[-1] else []
        self.mods = " ".join(last[1:])
        if last: toks[-1] = last[0]
        self.ops = toks
        R = [regs(x) for x in toks]
        U = lambda L: set().union(*L) if L else set()
        self.states = 1
        if op == "s_nop": self.states = int(toks[0], 0) + 1; self.cls = 'nop'
        elif op.startswith("v_mfma"):
            self.cls = 'mfma'; self.wr = R[0]; self.A, self.B, self.C = R[1], R[2], R[3]; self.rd = U(R[1:])
            self.passes = 8 if "32x32" in op else 4
        elif op.startswith("v_"):
            self.cls = 'valu'
            self.wr = set(R[0]); self.rd = U(R[1:])
            if "swap" in op: self.wr = R[0] | R[1]; self.rd = R[0] | R[1]
            if op.startswith(("v_dot2c", "v_fmac", "v_pk_fmac")) or "dpp" in op: self.rd |= R[0]
            if op.startswith(("v_add_co", "v_sub_co", "v_addc", "v_subb")): self.wr |= R[1]
            self.trans = op.startswith(TRANS); self.dpp = "dpp" in op or "row_" in self.mods or "quad_perm" in self.mods
            self.perm = op.startswith("v_permlane"); self.rl = op.startswith(("v_readlane", "v_readfirstlane")); self.dot = op.startswith("v_dot")
        elif op.startswith("ds_"):
            self.cls = 'ds'
            if op.startswith(("ds_read", "ds_bpermute", "ds_permute", "ds_swizzle")) or "_rtn" in op: self.wr = R[0]; self.rd = U(R[1:])
            else: self.rd = U(R)
        elif op.startswith(("buffer_", "global_")):
            self.cls = 'vmem'; self.lds = " lds" in " " + self.mods
            if "load" in op and not self.lds: self.wr = R[0]; self.rd = U(R[1:])
            else:
                self.rd = U(R)
                if "atomic" in op and "sc0" in self.mods: self.wr = R[0]
                if ("store" in op) and op.endswith(("x3", "x4")): self.data = R[0] if op.startswith("buffer") else R[1]
        elif op.startswith("s_"):
            self.cls = 'salu'
            if op.startswith(("s_cbranch", "s_branch")): self.target = toks[0]; self.uncond = op == "s_branch"
            elif op == "s_endpgm": self.uncond = True
            elif op.startswith(("s_cmp", "s_waitcnt", "s_barrier", "s_sleep", "s_setprio", "s_bitcmp")): self.rd = U(R)
            else: self.wr = R[0] if R else set(); self.rd = U(R[1:])
        else: raise Exception("unknown op " + line)
def need(p, c):
    n = 0
    V = lambda S: {x for x in S if x[0] != 's'}
    S = lambda S_: {x for x in S_ if x[0] == 's'}
    if p.cls == 'valu':
        w = V(p.wr); sw = S(p.wr)
        if c.cls == 'mfma' and w & c.rd: n = max(n, 3 if p.dot else 2)
        if c.cls == 'valu':
            if w & c.rd:
                if p.trans and not c.trans: n = max(n, 1)
                if c.dpp or c.perm: n = max(n, 2)
                if c.rl: n = max(n, 1)
            if p.dot and (w & (c.rd | c.wr)):
                if c.op != p.op or (w & set().union(*[regs(x) for x in c.ops[1:]])): n = max(n, 3)
            if sw & c.rd: n = max(n, 4 if c.op.startswith(("v_readlane", "v_writelane")) else 2)
        if p.dot and c.cls in ('ds', 'vmem') and w & (c.rd | c.wr): n = max(n, 3)
        if c.cls == 'vmem' and sw & c.rd: n = max(n, 5)
    if p.cls == 'mfma':
        big = {4: 8, 8: 12}[p.passes]
        if c.cls == 'mfma':
            if p.wr & (c.A | c.B): n = max(n, big)
            if p.wr & c.C and not (p.wr == c.C and p.passes == c.passes): n = max(n, big - 2)
            if p.wr & c.wr and not (p.wr & c.C): n = max(n, big - 2)
        elif c.cls in ('valu', 'ds', 'vmem'):
            if p.wr & (c.rd | c.wr): n = max(n, big)
            if c.cls == 'valu' and p.C & c.wr: n = max(n, {4: 3, 8: 7}[p.passes])
    if p.cls == 'salu' and ('s', 124) in p.wr and c.cls == 'vmem' and c.lds: n = max(n, 1)
    if p.cls == 'vmem' and p.data & c.wr: n = max(n, 2 if c.cls in ('valu', 'mfma') else 1)
    return n
def hazfix(text, verbose=False):
    L = [I(x) for x in text.split("\n")]
    total = 0
    changed = True
    while changed:
        changed = False
        src = {}
        for i, x in enumerate(L):
            if x.target: src.setdefault(x.target, []).append(i)
        def short(i, c, dist, seen):
            miss = 0; j = i - 1
            while j >= 0 and dist < 12:
                x = L[j]
                if x.label:
                    for k in src.get(x.label, []):
                        if (k, dist) not in seen:
                            seen.add((k, dist)); miss = max(miss, short(k, c, dist + 1, seen))
                elif not x.dir:
                    if x.uncond: break
                    miss = max(miss, need(x, c) - dist)
                    dist += x.states
                j -= 1
            return miss
        for i, c in enumerate(L):
            if c.label or c.dir or c.cls == 'nop': continue
            m = short(i, c, 0, set())
            if m > 0:
                if verbose: print("haz +%d before: %s" % (m, c.line.strip()))
                L.insert(i, I(f"  s_nop {m-1}")); total += m; changed = True
                break
    return "\n".join(x.line for x in L), total
```

```python
from common import *

def gen_k1(name="k1_kernel", prof=False, kidx=0):
    A = Asm()
    NS, NST = 4, 9
    SW, SX = 24576, 12288
    SLOT = SW + SX
    L_ST = NS*SLOT
    L_KV = L_ST + 768 + 1280
    LDS = L_KV + 2*6400
    assert LDS <= 163840
    P = Prof(A, prof, kidx, 60)
    sWS, sDBG = 4, 6
    sX, sWq, sO_ = 8, 12, 16
    sT, sRB, sRole, sW, sR0 = 24, 25, 26, 27, 28
    sOW, sOW2, sOX, sRS, sWSl, sCnt, sMW, sMX, sTmp, sTmp2 = 29, 30, 31, 32, 33, 34, 35, 36, 37, 38
    sEx = 40
    sC = 42
    sSH, sHH = 50, 51
    R = Alloc(1)
    vLane = R.get(); vT0 = R.get(); vT1 = R.get(); vT2 = R.get(); vT3 = R.get()
    vG = R.get(); vC = R.get()
    m0_ = R.mark()
    A(kernel_header(name))
    Lend = A.label("end"); Lcomp = A.label("comp"); Lsvc = A.label("svc"); Lq = A.label("q")
    A(f"s_cmp_ge_u32 s2, 256\ns_cbranch_scc1 {Lend}")
    A(f"s_load_dwordx4 {s(44,4)}, s[0:1], {KA_X}")
    A(f"s_load_dwordx4 {s(52,4)}, s[0:1], {KA_DBG}")
    P.stamp()
    A(f"""
    v_lshrrev_b32 {v(vT0)}, 6, v0
    s_and_b32 {s(sT)}, s2, 7
    s_lshr_b32 {s(sTmp)}, s2, 3
    v_readfirstlane_b32 {s(sW)}, {v(vT0)}
    v_and_b32 {v(vLane)}, 63, v0
    s_cmp_eq_u32 {s(sTmp)}, 31
    s_cbranch_scc1 {Lsvc}
    s_mul_i32 {s(sT)}, {s(sT)}, 31
    s_add_u32 {s(sT)}, {s(sT)}, {s(sTmp)}
    s_cmp_ge_u32 {s(sT)}, 242
    s_cbranch_scc1 {Lend}
    s_mul_i32 {s(sRB)}, {s(sT)}, 5958
    s_lshr_b32 {s(sRB)}, {s(sRB)}, 16
    s_mul_i32 {s(sTmp)}, {s(sRB)}, 11
    s_sub_u32 {s(sRole)}, {s(sT)}, {s(sTmp)}
    s_mul_i32 {s(sR0)}, {s(sRB)}, 94
    s_mov_b32 {s(sWSl)}, 0
    s_mov_b32 {s(sCnt)}, 0
    s_mov_b32 {s(sRS)}, 0
    s_cmp_lt_u32 {s(sW)}, 4
    s_cbranch_scc1 {Lcomp}
    """)
    vDW = [R.get() for _ in range(3)]; vDX = [R.get() for _ in range(3)]
    vRS = R.get(); XS = R.get(12, 4); SUM = R.get(6, 2); vOne = R.get()
    sCol, sJ = 48, 49
    A(f"""
    s_and_b32 {s(sW)}, {s(sW)}, 3
    s_mul_i32 {s(sCol)}, {s(sRole)}, 144
    s_add_u32 {s(sCol)}, {s(sCol)}, 1152
    s_andn2_b32 {s(sCol)}, {s(sCol)}, 63
    s_sub_u32 {s(sTmp)}, {s(sRole)}, 8
    s_mul_i32 {s(sTmp)}, {s(sTmp)}, 384
    s_cmp_lt_u32 {s(sRole)}, 8
    s_cselect_b32 {s(sCol)}, {s(sCol)}, {s(sTmp)}
    s_cselect_b32 {s(sJ)}, 960, 0
    s_mul_i32 {s(sTmp)}, {s(sW)}, {16*3456}
    s_add_u32 {s(sCol)}, {s(sCol)}, {s(sTmp)}
    v_lshrrev_b32 {v(vG)}, 2, {v(vLane)}
    v_and_b32 {v(vC)}, 3, {v(vLane)}
    v_mov_b32 {v(vOne)}, {s(sJ)}
    """)
    for i in range(3):
        A(f"""
        v_add_u32 {v(vT0)}, {16*i}, {v(vG)}
        v_cmp_le_u32 vcc, 24, {v(vT0)}
        v_cndmask_b32 {v(vT1)}, 0, 24, vcc
        v_sub_u32 {v(vT0)}, {v(vT0)}, {v(vT1)}
        v_cndmask_b32 {v(vT1)}, 0, 4, vcc
        v_and_b32 {v(vT2)}, 3, {v(vT0)}
        v_add_u32 {v(vT1)}, {v(vT1)}, {v(vT2)}
        v_mul_u32_u24 {v(vT1)}, 3456, {v(vT1)}
        v_lshrrev_b32 {v(vT0)}, 2, {v(vT0)}
        v_lshl_add_u32 {v(vT1)}, {v(vT0)}, 6, {v(vT1)}
        v_cmp_le_u32 vcc, 3, {v(vT0)}
        v_cndmask_b32 {v(vT0)}, 0, {v(vOne)}, vcc
        v_add3_u32 {v(vT1)}, {v(vT1)}, {v(vT0)}, {s(sCol)}
        v_lshl_add_u32 {v(vDW[i])}, {v(vC)}, 4, {v(vT1)}
        """)
        if i != 1: A(f"v_add_u32 {v(vDW[i])}, {1024 - 1024*i}, {v(vDW[i])}")
    vDW2 = [R.get() for _ in range(3)]
    for i in range(3): A(f"v_xor_b32 {v(vDW2[i])}, 32, {v(vDW[i])}")
    A(f"""
    s_mul_i32 {s(sTmp)}, {s(sW)}, 24
    s_lshr_b32 {s(sTmp2)}, {s(sW)}, 1
    s_sub_u32 {s(sTmp2)}, {s(sR0)}, {s(sTmp2)}
    v_lshrrev_b32 {v(vG)}, 3, {v(vLane)}
    v_add_u32 {v(vG)}, {s(sTmp)}, {v(vG)}
    v_and_b32 {v(vC)}, 7, {v(vLane)}
    """)
    for i in range(3):
        A(f"""
        v_add_u32 {v(vT0)}, {8*i}, {v(vG)}
        v_bfe_u32 {v(vT1)}, {v(vT0)}, 1, 3
        v_xor_b32 {v(vT1)}, {v(vT1)}, {v(vC)}
        v_add_u32 {v(vT0)}, {s(sTmp2)}, {v(vT0)}
        v_min_u32 {v(vT0)}, {S_-1}, {v(vT0)}
        v_mul_u32_u24 {v(vT0)}, 1152, {v(vT0)}
        v_lshl_add_u32 {v(vDX[i])}, {v(vT1)}, 4, {v(vT0)}
        """)
        if i: A(f"v_subrev_u32 {v(vDX[i])}, {1024*i}, {v(vDX[i])}")
    A(f"""
    s_mul_i32 {s(sMW)}, {s(sW)}, 6144
    s_mul_i32 {s(sMX)}, {s(sW)}, 3072
    s_add_u32 {s(sMX)}, {s(sMX)}, {SW}
    v_lshl_add_u32 {v(vRS)}, {v(vLane)}, 4, {s(sMX)}
    s_mov_b32 {s(sOW)}, 0
    s_mov_b32 {s(sOX)}, 0
    s_mov_b32 {s(sEx)}, -1
    s_and_b32 {s(sTmp)}, {s(sW)}, 1
    s_cselect_b32 {s(sEx+1)}, 0x00ffffff, -1
    v_mov_b32 {v(vOne)}, 0x3f803f80
    s_waitcnt lgkmcnt(0)
    """)
    A.srd(sX, 44, SZ_SD)
    A(f"s_sub_u32 {s(sWq)}, s46, 1024\ns_subb_u32 {s(sWq+1)}, s47, 0\ns_mov_b32 {s(sWq+2)}, {D_*1728*2+1024}\ns_mov_b32 {s(sWq+3)}, 0x20000")
    for i in range(6): A(f"v_mov_b32 {v(SUM+i)}, 0")
    def dma_stage():
        A(f"s_add_u32 m0, {s(sWSl)}, {s(sMX)}\ns_add_u32 {s(sOW2)}, {s(sOW)}, {8*3456}")
        for i in range(3):
            if i == 2: A(f"s_mov_b64 exec, {s(sEx,2)}")
            A(f"buffer_load_dwordx4 {v(vDX[i])}, {s(sX,4)}, {s(sOX)} offen offset:{i*1024} lds")
        A(f"s_mov_b64 exec, -1\ns_add_u32 m0, {s(sWSl)}, {s(sMW)}\ns_add_u32 {s(sOX)}, {s(sOX)}, 128")
        for i in range(3): A(f"buffer_load_dwordx4 {v(vDW[i])}, {s(sWq,4)}, {s(sOW)} offen offset:{i*1024} lds")
        A(f"s_add_u32 m0, m0, 3072\ns_add_u32 {s(sOW)}, {s(sOW)}, {64*3456}")
        for i in range(3): A(f"buffer_load_dwordx4 {v(vDW2[i])}, {s(sWq,4)}, {s(sOW2)} offen offset:{i*1024} lds")
        A(f"s_add_u32 {s(sWSl)}, {s(sWSl)}, {SLOT}")
    def stats_rd():
        A(f"v_add_u32 {v(vT0)}, {s(sRS)}, {v(vRS)}")
        for i in range(3): A(f"ds_read_b128 {v(XS+4*i,4)}, {v(vT0)} offset:{i*1024}")
        A(f"s_add_u32 {s(sRS)}, {s(sRS)}, {SLOT}\ns_cmp_eq_u32 {s(sRS)}, {NS*SLOT}\ns_cselect_b32 {s(sRS)}, 0, {s(sRS)}")
    def stats_acc():
        A("s_waitcnt lgkmcnt(0)")
        for j in range(4):
            for i in range(3):
                A(f"v_dot2c_f32_bf16 {v(SUM+2*i)}, {v(XS+4*i+j)}, {v(vOne)}")
                A(f"v_dot2c_f32_bf16 {v(SUM+2*i+1)}, {v(XS+4*i+j)}, {v(XS+4*i+j)}")
    Lp = A.label("pro"); Ll = A.label("ld")
    A(f"{Lp}:")
    dma_stage()
    A(f"s_cmp_lt_u32 {s(sWSl)}, {(NS-1)*SLOT}\ns_cbranch_scc1 {Lp}")
    P.stamp()
    A(f"{Ll}:")
    A(f"s_waitcnt vmcnt({9*(NS-2)})\ns_barrier")
    stats_rd()
    dma_stage()
    stats_acc()
    A(f"""
    s_cmp_eq_u32 {s(sWSl)}, {NS*SLOT}
    s_cselect_b32 {s(sWSl)}, 0, {s(sWSl)}
    s_add_u32 {s(sCnt)}, {s(sCnt)}, 1
    s_cmp_lt_u32 {s(sCnt)}, {NST-NS+1}
    s_cbranch_scc1 {Ll}
    """)
    for i in range(NS-2, -1, -1):
        A(f"s_waitcnt vmcnt({9*i})\ns_barrier")
        stats_rd(); stats_acc()
    A("s_nop 2")
    for dpp in ["quad_perm:[1,0,3,2]", "quad_perm:[2,3,0,1]", "row_half_mirror"]:
        for i in range(6): A(f"v_add_f32_dpp {v(SUM+i)}, {v(SUM+i)}, {v(SUM+i)} {dpp} row_mask:0xf bank_mask:0xf")
    A(f"v_lshlrev_b32 {v(vT3)}, 2, {v(vG)}\ns_mov_b32 {s(sC)}, {fhex(1.0/576)}\ns_mov_b32 {s(sC+1)}, {fhex(1e-5)}")
    for i in range(3):
        m, q = SUM+2*i, SUM+2*i+1
        A(f"""
        v_mul_f32 {v(m)}, {s(sC)}, {v(m)}
        v_mul_f32 {v(q)}, {s(sC)}, {v(q)}
        v_fma_f32 {v(q)}, -{v(m)}, {v(m)}, {v(q)}
        v_max_f32 {v(q)}, 0, {v(q)}
        v_add_f32 {v(q)}, {s(sC+1)}, {v(q)}
        v_rsq_f32 {v(q)}, {v(q)}
        v_add_u32 {v(vT0)}, {8*i}, {v(vG)}
        v_add_u32 {v(vT1)}, {s(sTmp2)}, {v(vT0)}
        v_mul_f32 {v(m)}, -{v(m)}, {v(q)}
        v_cmp_gt_u32 vcc, {S_}, {v(vT1)}
        v_cndmask_b32 {v(m)}, 0, {v(m)}, vcc
        v_cndmask_b32 {v(q)}, 0, {v(q)}, vcc
        """)
        if i == 2:
            A(f"""
            s_mov_b64 vcc, {s(sEx,2)}
            v_cndmask_b32 {v(m)}, 0, {v(m)}, vcc
            v_cndmask_b32 {v(q)}, 0, {v(q)}, vcc
            """)
    A(f"v_add_u32 {v(vT3)}, {L_ST}, {v(vT3)}")
    for i in range(3):
        A(f"ds_write_b32 {v(vT3)}, {v(SUM+2*i+1)} offset:{32*i}\nds_write_b32 {v(vT3)}, {v(SUM+2*i)} offset:{384+32*i}")
    A("s_waitcnt lgkmcnt(0)\ns_barrier")
    Lx = A.label("lx")
    A(f"s_cmp_lg_u32 {s(sW)}, 0\ns_cbranch_scc1 {Lx}\ns_cmp_ge_u32 {s(sRole)}, 8\ns_cbranch_scc1 {Lx}")
    Lpl = A.label("pl"); Lpg = A.label("pg")
    A.srd(sO_, 52, 256)
    A(f"""
    s_lshl_b32 {s(sTmp)}, {s(sRole)}, 2
    v_mov_b32 {v(vT0)}, {s(sTmp)}
    s_mov_b32 {s(sCnt)}, 0
    {Lpl}:
    buffer_load_dword {v(vT1)}, {v(vT0)}, {s(sO_,4)}, 0 offen sc1
    s_add_u32 {s(sCnt)}, {s(sCnt)}, 1
    s_waitcnt vmcnt(0)
    v_cmp_ne_u32 vcc, 0, {v(vT1)}
    s_cmp_gt_u32 {s(sCnt)}, 0x40000
    s_cbranch_scc1 {Lpg}
    s_cbranch_vccz {Lpl}
    {Lpg}:
    s_barrier
    {Lx}:
    """)
    if prof:
        P.stamp()
        A(f"s_mov_b64 s[4:5], s[54:55]")
        P.flush(sWS, XS, None, wave_expr=f"s_add_u32 {s(sW)}, {s(sW)}, 4", wave_s2=sW)
    A("s_endpgm")
    hi_ld = R.hi
    A(f"{Lsvc}:")
    A(f"""
    s_mul_i32 {s(sTmp)}, {s(sT)}, 6400
    v_lshl_add_u32 {v(vT0)}, v0, 4, {s(sTmp)}
    v_mov_b32 v12, 0
    v_mov_b32 v13, 0
    v_mov_b32 v14, 0
    v_mov_b32 v15, 0
    v_mov_b32 v16, -1
    v_mov_b32 v17, -1
    v_mov_b32 v18, -1
    v_mov_b32 v19, -1
    s_mul_i32 {s(sTmp)}, {s(sT)}, 6144
    v_lshl_add_u32 {v(vT1)}, v0, 4, {s(sTmp)}
    v_cmp_gt_u32 vcc, 400, v0
    v_cndmask_b32 {v(vT0)}, -1, {v(vT0)}, vcc
    v_cmp_gt_u32 vcc, 384, v0
    v_cndmask_b32 {v(vT1)}, -1, {v(vT1)}, vcc
    s_waitcnt lgkmcnt(0)
    """)
    A.srd_off(sX, 54, WS_KV, 32*KV_HEAD)
    A.srd_off(sWq, 54, WS_ST, 64*3*256)
    A.srd(sO_, 52, 256)
    A(f"""
    buffer_store_dwordx4 v[12:15], {v(vT0)}, {s(sX,4)}, 0 offen sc1
    buffer_store_dwordx4 v[16:19], {v(vT1)}, {s(sWq,4)}, 0 offen sc1
    s_lshl_b32 {s(sTmp)}, {s(sT)}, 2
    v_mov_b32 {v(vT2)}, {s(sTmp)}
    v_cmp_eq_u32 vcc, 0, v0
    v_cndmask_b32 {v(vT2)}, -1, {v(vT2)}, vcc
    v_mov_b32 {v(vT3)}, 1
    s_waitcnt vmcnt(0)
    s_barrier
    buffer_store_dword {v(vT3)}, {v(vT2)}, {s(sO_,4)}, 0 offen sc1
    s_endpgm
    """)
    R.release(m0_)
    vRXb = [R.get(), R.get()]; vRX = [R.get(), R.get()]
    vRWb = [R.get() for _ in range(5)]; vRW = [R.get() for _ in range(5)]
    vSt = R.get()
    FX = [R.get(12, 4), R.get(12, 4)]
    FW = [R.get(24, 4), R.get(24, 4)]
    ACC = R.get(72, 4)
    TMP = R.get(24, 4)
    P.n = 1 if prof else 0
    A(f"{Lcomp}:")
    A("s_setprio 1")
    A(f"""
    s_lshr_b32 {s(sSH)}, {s(sW)}, 1
    s_and_b32 {s(sHH)}, {s(sW)}, 1
    v_lshrrev_b32 {v(vG)}, 4, {v(vLane)}
    v_and_b32 {v(vC)}, 15, {v(vLane)}
    """)
    A(f"""
    s_mul_i32 {s(sTmp)}, {s(sW)}, {SLOT}
    s_add_u32 {s(sTmp)}, {s(sTmp)}, {SW + 47*128}
    v_lshrrev_b32 {v(vT0)}, 5, {v(vLane)}
    v_mul_u32_u24 {v(vT0)}, {48*128}, {v(vT0)}
    v_and_b32 {v(vT1)}, 31, {v(vLane)}
    v_lshl_add_u32 {v(vT0)}, {v(vT1)}, 2, {v(vT0)}
    v_add_u32 {v(vT0)}, {s(sTmp)}, {v(vT0)}
    v_mov_b32 {v(vT1)}, 0x3f803f80
    ds_write_b32 {v(vT0)}, {v(vT1)}
    """)
    for i in range(72): A(f"v_mov_b32 {v(ACC+i)}, 0")
    A(f"""
    v_lshlrev_b32 {v(vT0)}, 4, v0
    v_add_u32 {v(vT0)}, {L_KV}, {v(vT0)}
    ds_write_b128 {v(vT0)}, {v(ACC,4)}
    ds_write_b128 {v(vT0)}, {v(ACC,4)} offset:4096
    ds_write_b128 {v(vT0)}, {v(ACC,4)} offset:8192
    ds_write_b128 {v(vT0)}, {v(ACC,4)} offset:{12800-4096}
    """)
    A(f"""
    s_mul_i32 {s(sTmp)}, {s(sSH)}, {48*128}
    s_add_u32 {s(sTmp)}, {s(sTmp)}, {SW}
    v_lshrrev_b32 {v(vT0)}, 1, {v(vC)}
    v_xor_b32 {v(vT0)}, {v(vT0)}, {v(vG)}
    v_lshlrev_b32 {v(vT0)}, 4, {v(vT0)}
    v_lshl_add_u32 {v(vT0)}, {v(vC)}, 7, {v(vT0)}
    v_add_u32 {v(vRXb[0])}, {s(sTmp)}, {v(vT0)}
    v_xor_b32 {v(vRXb[1])}, 64, {v(vRXb[0])}
    """)
    A(f"""
    v_mul_u32_u24 {v(vT0)}, 3072, {v(vG)}
    v_bfe_u32 {v(vT1)}, {v(vLane)}, 2, 2
    v_lshl_add_u32 {v(vSt)}, {v(vT1)}, 6, {v(vT0)}
    v_and_b32 {v(vT3)}, 1, {v(vG)}
    v_lshlrev_b32 {v(vT3)}, 5, {v(vT3)}
    v_and_b32 {v(vT2)}, 3, {v(vLane)}
    """)
    for i in range(12): A(f"v_mov_b32 {v(FX[1]+i)}, 0")
    for i in range(24): A(f"v_mov_b32 {v(FW[1]+i)}, 0")
    A(f"s_cmp_ge_u32 {s(sRole)}, 8\ns_cbranch_scc1 {Lq}")
    def waddr(dst):
        A(f"""
        v_lshrrev_b32 {v(vT1)}, 6, {v(vT0)}
        v_and_b32 {v(vT0)}, 63, {v(vT0)}
        v_xor_b32 {v(vT0)}, {v(vT0)}, {v(vT3)}
        v_lshl_add_u32 {v(vT0)}, {v(vT1)}, 8, {v(vT0)}
        v_add_u32 {v(dst)}, {v(vT0)}, {v(vSt)}
        """)
    def mainloop(nT, wread, swap, acc, nW):
        def reads(buf, ks):
            X = [f"ds_read_b128 {v(FX[buf]+4*t,4)}, {v(vRX[ks])} offset:{t*2048}" for t in range(3)]
            W = [wread(buf, ks, T, sec) for T in range(nT) for sec in range(2)]
            return W[:2] + X + W[2:]
        def mfmas(buf):
            L = []
            for T in range(nT):
                for t in range(3):
                    a_, b_ = (v(FW[buf]+4*T,4), v(FX[buf]+4*t,4)) if swap else (v(FX[buf]+4*t,4), v(FW[buf]+4*T,4))
                    L.append(f"v_mfma_f32_16x16x32_bf16 {v(acc(t,T),4)}, {a_}, {b_}, {v(acc(t,T),4)}")
            return L
        upd = [f"v_add_u32 {v(vRX[i])}, {s(sRS)}, {v(vRXb[i])}" for i in range(2)] + [f"v_add_u32 {v(vRW[i])}, {s(sRS)}, {v(vRWb[i])}" for i in range(nW)]
        for u in upd: A(u)
        P.stamp()
        Lk = A.label("k")
        A(f".p2align 6\n{Lk}:\ns_waitcnt lgkmcnt(0)\ns_barrier")
        pre = [f"s_add_u32 {s(sRS)}, {s(sRS)}, {SLOT}\ns_cmp_eq_u32 {s(sRS)}, {NS*SLOT}", f"s_cselect_b32 {s(sRS)}, 0, {s(sRS)}\ns_add_u32 {s(sCnt)}, {s(sCnt)}, 1"]
        for ins in front(mfmas(1), reads(0, 0) + pre, 1): A(ins)
        A("s_waitcnt lgkmcnt(0)")
        rd = reads(1, 1)
        tail = upd + [f"s_cmp_lt_u32 {s(sCnt)}, {NST}"]
        m = mfmas(0)
        seq = front(m[:len(rd)], rd, 1) + front(m[len(rd):], tail, 4)
        for ins in seq: A(ins)
        A(f"s_cbranch_scc1 {Lk}\ns_waitcnt lgkmcnt(0)")
        for ins in mfmas(1): A(ins)
        P.stamp()
        A("s_barrier")
    def phi(x0, x1pair, T):
        A(f"""
        v_pk_mul_f32 {v(T,2)}, {v(x0,2)}, {s(sC,2)}
        v_max_f32 {v(x0)}, 0, {v(x0)}
        v_min_f32 {v(T)}, 0, {v(T)}
        v_min_f32 {v(T+1)}, 0, {v(T+1)}
        v_exp_f32 {v(T)}, {v(T)}
        v_exp_f32 {v(T+1)}, {v(T+1)}
        v_max_f32 {v(x0+1)}, 0, {v(x0+1)}
        v_pk_add_f32 {v(x0,2)}, {v(x0,2)}, {s(sC+2,2)}
        v_pk_add_f32 {v(x1pair,2)}, {v(x0,2)}, {v(T,2)}
        """)
    def consts():
        A(f"s_mov_b32 {s(sC)}, {fhex(LOG2E)}\ns_mov_b32 {s(sC+1)}, {fhex(LOG2E)}\ns_mov_b32 {s(sC+2)}, {fhex(1e-6)}\ns_mov_b32 {s(sC+3)}, {fhex(1e-6)}")
    A(f"""
    s_and_b32 {s(sTmp)}, {s(sRole)}, 3
    s_lshl_b32 {s(sTmp)}, {s(sTmp)}, 4
    s_mul_i32 {s(sTmp2)}, {s(sHH)}, 72
    s_add_u32 {s(sTmp)}, {s(sTmp)}, {s(sTmp2)}
    v_lshl_add_u32 {v(TMP)}, {v(vT2)}, 3, {s(sTmp)}
    """)
    for T in range(5):
        if T == 2:
            A(f"v_cmp_lt_u32 vcc, 0, {v(vT2)}\nv_cndmask_b32 {v(vT0)}, 0, 1, vcc\nv_mul_u32_u24 {v(vT0)}, 120, {v(vT0)}\nv_add3_u32 {v(vT0)}, {v(vT0)}, {v(TMP)}, 64")
        else:
            A(f"v_add_u32 {v(vT0)}, {32*T + (120 if T > 2 else 0)}, {v(TMP)}")
        waddr(vRWb[T])
    acck = lambda t, T: ACC + (T*3 + t)*4
    mainloop(5, lambda buf, ks, T, sec: f"ds_read_b64_tr_b16 {v(FW[buf]+4*T+2*sec,2)}, {v(vRW[T])} offset:{ks*12288+sec*1536}", False, acck, 5)
    SA_, SB_ = FX[0], FX[1]
    CS = FW[0]
    PK = FW[1]
    A(f"""
    s_mul_i32 {s(sTmp)}, {s(sSH)}, 192
    s_add_u32 {s(sTmp)}, {s(sTmp)}, {L_ST}
    v_lshl_add_u32 {v(vT0)}, {v(vG)}, 4, {s(sTmp)}
    v_lshlrev_b32 {v(vT1)}, 2, {v(vC)}
    v_add_u32 {v(vT1)}, 192, {v(vT1)}
    """)
    for t in range(3): A(f"ds_read_b128 {v(SA_+4*t,4)}, {v(vT0)} offset:{64*t}\nds_read_b128 {v(SB_+4*t,4)}, {v(vT0)} offset:{384+64*t}")
    consts()
    for T in range(5): A(f"ds_bpermute_b32 {v(CS+2*T)}, {v(vT1)}, {v(acck(2,T)+3)}")
    vE, vA3, vA4 = vRWb[0], vRWb[1], vRWb[2]
    A(f"""
    s_mul_i32 {s(sTmp)}, {s(sHH)}, {2*KV_HEAD}
    s_mul_i32 {s(sTmp2)}, {s(sSH)}, 6400
    s_add_u32 {s(sTmp)}, {s(sTmp)}, {s(sTmp2)}
    s_add_u32 {s(sTmp)}, {s(sTmp)}, {L_KV - 512}
    v_mul_u32_u24 {v(vT3)}, 320, {v(vG)}
    v_cmp_eq_u32 vcc, 0, {v(vG)}
    v_add_u32 {v(vT3)}, {s(sTmp)}, {v(vT3)}
    v_lshl_add_u32 {v(vE)}, {v(vC)}, 4, {v(vT3)}
    v_cndmask_b32 {v(vT0)}, 0, 1, vcc
    v_cmp_gt_u32 vcc, 8, {v(vC)}
    v_mul_u32_u24 {v(vT0)}, {5*320+8}, {v(vT0)}
    v_add_u32 {v(vT3)}, {KV_HEAD-320}, {v(vE)}
    v_add_u32 {v(vT3)}, {v(vT0)}, {v(vT3)}
    v_cndmask_b32 {v(vT0)}, -8, 10, vcc
    v_cndmask_b32 {v(vT2)}, 10, 8, vcc
    v_lshl_add_u32 {v(vA3)}, {v(vT0)}, 4, {v(vT3)}
    v_lshl_add_u32 {v(vA4)}, {v(vT2)}, 4, {v(vT3)}
    """)
    mk_c_lt4 = sum(1 << l for l in range(64) if (l & 15) < 4)
    mk_c_eq8 = sum(1 << l for l in range(64) if (l & 15) == 8)
    sM2, sM4 = 56, 58
    A(f"s_mov_b32 {s(sM2)}, 0x{mk_c_lt4 & 0xffffffff:x}\ns_mov_b32 {s(sM2+1)}, 0x{mk_c_lt4 >> 32:x}\ns_mov_b32 {s(sM4)}, 0x{mk_c_eq8 & 0xffffffff:x}\ns_mov_b32 {s(sM4+1)}, 0x{mk_c_eq8 >> 32:x}")
    A("s_waitcnt lgkmcnt(0)")
    OPR = PK
    def op(T): return (OPR + 6*T) if T < 4 else TMP + 16
    for T in range(5):
        for t in range(3):
            for hf in range(2):
                x = acck(t, T) + 2*hf
                tt = TMP + ((t*2+hf) & 1)*4
                A(f"v_pk_mul_f32 {v(tt,2)}, {v(SB_+4*t+2*hf,2)}, {v(CS+2*T,2)} op_sel_hi:[1,0]")
                A(f"v_pk_fma_f32 {v(x,2)}, {v(x,2)}, {v(SA_+4*t+2*hf,2)}, {v(tt,2)}")
                if T < 2:
                    phi(x, x, tt)
                elif T == 2:
                    A(f"v_mov_b32 {v(tt+2)}, {v(x)}\nv_mov_b32 {v(tt+3)}, {v(x+1)}")
                    phi(tt+2, tt+2, tt)
                    A(f"v_cndmask_b32 {v(x)}, {v(x)}, {v(tt+2)}, {s(sM2,2)}\nv_cndmask_b32 {v(x+1)}, {v(x+1)}, {v(tt+3)}, {s(sM2,2)}")
                elif T == 4:
                    for e in range(2):
                        A(f"v_cmp_ne_u32 vcc, 0, {v(SA_+4*t+2*hf+e)}\nv_cndmask_b32 {v(tt+e)}, 0, 1.0, vcc\nv_cndmask_b32 {v(x+e)}, {v(x+e)}, {v(tt+e)}, {s(sM4,2)}")
                A(f"v_cvt_pk_bf16_f32 {v(op(T)+2*t+hf)}, {v(x)}, {v(x+1)}")
    P.stamp()
    pairs = [(2,0),(3,0),(4,0),(2,1),(3,1),(4,1),(3,2),(4,2)]
    KD = ACC
    for i, (Ta, Tb) in enumerate(pairs): A(f"v_mfma_f32_16x16x32_bf16 {v(KD+4*i,4)}, {v(op(Tb),4)}, {v(op(Ta),4)}, 0")
    for i, (Ta, Tb) in enumerate(pairs): A(f"v_mfma_f32_16x16x16_bf16 {v(KD+4*i,4)}, {v(op(Tb)+4,2)}, {v(op(Ta)+4,2)}, {v(KD+4*i,4)}")
    mk = lambda f: sum(1 << l for l in range(64) if f(l >> 4, l & 15))
    kd = lambda pr: KD + 4*pairs.index(pr)
    wr = [((2,0), 0, 4, vE, -64, lambda g, c: c >= 4), ((3,0), 0, 4, vE, 192, lambda g, c: c <= 5), ((4,0), 0, 4, vE, 160, lambda g, c: c == 8),
          ((2,1), 0, 2, vE, 1280-64, lambda g, c: g == 0 and c >= 4), ((3,1), 0, 2, vE, 1280+192, lambda g, c: g == 0 and c <= 5),
          ((3,1), 0, 4, vA3, 0, lambda g, c: g >= 1 and c >= 6), ((3,1), 2, 2, vA3, 0, lambda g, c: g == 0 and c >= 6),
          ((3,2), 0, 4, vA3, -328, lambda g, c: g == 0 and c >= 6),
          ((4,1), 0, 2, vE, 1280+160, lambda g, c: g == 0 and c == 8),
          ((4,1), 0, 4, vA4, 0, lambda g, c: g >= 1 and c <= 8), ((4,1), 2, 2, vA4, 0, lambda g, c: g == 0 and c <= 8),
          ((4,2), 0, 4, vA4, -328, lambda g, c: g == 0 and c <= 8)]
    A.srd_off(sO_, 54, WS_KV, 32*KV_HEAD)
    A(f"""
    v_lshlrev_b32 {v(vT0)}, 2, v0
    s_mul_i32 {s(sTmp)}, {s(sRole)}, 6400
    v_add_u32 {v(vT1)}, {s(sTmp)}, {v(vT0)}
    v_add_u32 {v(vT0)}, {L_KV}, {v(vT0)}
    s_movk_i32 {s(sTmp)}, 4096
    """)
    cur = None
    for pr, r0, n, ad, off, f in wr:
        m = mk(f)
        if m != cur: set_exec(A, m); cur = m
        A(f"ds_write_b{32*n} {v(ad)}, {v(kd(pr)+r0, n)} offset:{512+off}")
    A("s_mov_b64 exec, -1\ns_waitcnt lgkmcnt(0)\ns_barrier")
    for i in range(7): A(f"ds_read_b32 {v(TMP+2*i)}, {v(vT0)} offset:{1024*i}\nds_read_b32 {v(TMP+2*i+1)}, {v(vT0)} offset:{6400+1024*i}")
    for i in range(7):
        A(f"s_waitcnt lgkmcnt({12-2*i})")
        if i == 6:
            Lsk = A.label("sk")
            A(f"s_cmp_lg_u32 {s(sW)}, 0\ns_cbranch_scc1 {Lsk}")
        A(f"v_add_f32 {v(TMP+2*i)}, {v(TMP+2*i)}, {v(TMP+2*i+1)}")
        A(f"buffer_atomic_add_f32 {v(TMP+2*i)}, {v(vT1)}, {s(sO_,4)}, {s(sTmp) if i >= 4 else 0} offen offset:{1024*(i&3)}")
    A(f"{Lsk}:")
    Lfin = A.label("fin")
    if prof: A(f"s_branch {Lfin}")
    else: A("s_endpgm")
    npk = P.n
    A(f"{Lq}:")
    P.n = 1 if prof else 0
    A(f"s_mul_i32 {s(sTmp)}, {s(sHH)}, 192\nv_lshl_add_u32 {v(vT0)}, {v(vT2)}, 3, {s(sTmp)}")
    waddr(vRWb[0])
    A(f"v_xor_b32 {v(vRWb[1])}, 32, {v(vRWb[0])}")
    accq = lambda t, T: ACC + (T*3 + t)*4
    mainloop(6, lambda buf, ks, T, sec: f"ds_read_b64_tr_b16 {v(FW[buf]+4*T+2*sec,2)}, {v(vRW[T&1])} offset:{ks*12288+sec*1536+(T>>1)*256}", True, accq, 2)
    QA, QB = FX[0], FX[0] + 6
    CSQ = FW[0]
    A(f"""
    s_mul_i32 {s(sTmp)}, {s(sSH)}, 192
    s_add_u32 {s(sTmp)}, {s(sTmp)}, {L_ST}
    v_lshl_add_u32 {v(vT0)}, {v(vC)}, 2, {s(sTmp)}
    """)
    for t in range(3): A(f"ds_read_b32 {v(QA+2*t)}, {v(vT0)} offset:{64*t}\nds_read_b32 {v(QB+2*t)}, {v(vT0)} offset:{384+64*t}")
    consts()
    A.srd_off(sO_, 54, WS_PQ, SZ_SD)
    A(f"""
    s_mul_i32 {s(sTmp)}, {s(sSH)}, 47
    s_add_u32 {s(sTmp)}, {s(sTmp)}, {s(sR0)}
    v_add_u32 {v(vT0)}, {s(sTmp)}, {v(vC)}
    v_mul_u32_u24 {v(vT0)}, 1152, {v(vT0)}
    s_sub_u32 {s(sTmp)}, {s(sRole)}, 8
    s_lshl_b32 {s(sTmp)}, {s(sTmp)}, 1
    s_add_u32 {s(sTmp)}, {s(sTmp)}, {s(sHH)}
    s_mul_i32 {s(sTmp)}, {s(sTmp)}, 192
    v_and_b32 {v(vT1)}, 1, {v(vG)}
    v_lshl_add_u32 {v(vT0)}, {v(vT1)}, 5, {v(vT0)}
    v_lshrrev_b32 {v(vT1)}, 1, {v(vG)}
    v_lshl_add_u32 {v(vT0)}, {v(vT1)}, 4, {v(vT0)}
    v_add_u32 {v(vRX[0])}, {s(sTmp)}, {v(vT0)}
    v_add_u32 {v(vRX[1])}, {16*1152}, {v(vRX[0])}
    v_add_u32 {v(vRW[0])}, {32*1152}, {v(vRX[0])}
    v_cmp_ne_u32 vcc, 15, {v(vC)}
    v_cndmask_b32 {v(vRW[0])}, 0x40000000, {v(vRW[0])}, vcc
    """)
    vSA = [vRX[0], vRX[1], vRW[0]]
    for T in range(6):
        for r in range(4): A(f"v_mov_b32_dpp {v(CSQ+4*T+r)}, {v(accq(2,T)+r)} row_newbcast:15 row_mask:0xf bank_mask:0xf")
    A("s_waitcnt lgkmcnt(0)")
    k = 0
    for Pp in range(3):
        for t in range(3):
            O = FW[1] + (k % 4)*4; k += 1
            for h2 in range(4):
                T = 2*Pp + (h2 >> 1); hf = h2 & 1
                x = accq(t, T) + 2*hf
                tt = TMP + (h2 & 1)*4
                A(f"v_pk_mul_f32 {v(tt,2)}, {v(CSQ+4*T+2*hf,2)}, {v(QB+2*t,2)} op_sel_hi:[1,0]")
                A(f"v_pk_fma_f32 {v(x,2)}, {v(x,2)}, {v(QA+2*t,2)}, {v(tt,2)} op_sel_hi:[1,0,1]")
                phi(x, x, tt)
                A(f"v_cvt_pk_bf16_f32 {v(O+h2)}, {v(x)}, {v(x+1)}")
            A(f"s_nop 1\nv_permlane16_swap_b32 {v(O)}, {v(O+2)}\nv_permlane16_swap_b32 {v(O+1)}, {v(O+3)}")
            A(f"buffer_store_dwordx4 {v(O,4)}, {v(vSA[t])}, {s(sO_,4)}, 0 offen offset:{64*Pp} sc1")
    P.stamp()
    A(f"{Lfin}:")
    if prof:
        P.stamp()
        A("s_waitcnt vmcnt(0)")
        P.stamp()
        A(f"s_mov_b64 s[4:5], s[54:55]")
        P.flush(sWS, TMP, sW)
    A(f"{Lend}:\ns_endpgm")
    return A.text(), kernel_desc(name, max(R.hi, hi_ld)), f"; @launch kernel={name} grid=(256,1,1) block=(512,1,1) lds={LDS}"

if __name__ == "__main__":
    for T in range(242): assert (T*5958) >> 16 == T//11, T
    open("k1_test.s", "w").write(assemble_file([gen_k1(prof=True)]))
```

```python
from common import *

def gen_k2(name="k2_kernel", prof=False, kidx=1, svc=None):
    A = Asm()
    NS, NST = 5, 9
    SLOT = 24576
    L_PQ = 0
    L_W = 36864
    L_ST = L_W + NS*SLOT
    L_AB = L_ST + 1024
    LDS = L_AB + 1024
    assert LDS <= 163840
    NWG = 192
    P = Prof(A, prof, kidx, 60)
    sWS = 4
    sX, sWo, sPQ, sO_ = 8, 12, 16, 20
    sT, sRT, sCG, sW = 24, 25, 26, 27
    sOW, sOW2, sOX, sRS, sWSl, sCnt, sMW, sTmp, sTmp2 = 29, 30, 31, 32, 33, 34, 35, 37, 38
    sM = [40, 42, 48, 50]
    sC = 56
    R = Alloc(1)
    vLane = R.get(); vT0 = R.get(); vT1 = R.get(); vT2 = R.get(); vT3 = R.get()
    vG = R.get(); vC = R.get()
    m0_ = R.mark()
    A(kernel_header(name))
    Lend = A.label("end"); Lcomp = A.label("comp"); Lsvc = A.label("svc")
    A(f"s_cmp_ge_u32 s2, {NWG}\ns_cbranch_scc1 {Lsvc if svc else Lend}")
    A(f"s_load_dwordx2 {s(sWS,2)}, s[0:1], {KA_WS}")
    A(f"s_load_dwordx2 {s(44,2)}, s[0:1], {KA_X}")
    A(f"s_load_dwordx2 {s(46,2)}, s[0:1], {KA_WO}")
    P.stamp()
    A(f"""
    v_lshrrev_b32 {v(vT0)}, 6, v0
    s_and_b32 {s(sT)}, s2, 7
    s_lshr_b32 {s(sTmp)}, s2, 3
    v_readfirstlane_b32 {s(sW)}, {v(vT0)}
    v_and_b32 {v(vLane)}, 63, v0
    s_mul_i32 {s(sT)}, {s(sT)}, 24
    s_add_u32 {s(sT)}, {s(sT)}, {s(sTmp)}
    s_mul_i32 {s(sRT)}, {s(sT)}, 21846
    s_lshr_b32 {s(sRT)}, {s(sRT)}, 16
    s_mul_i32 {s(sTmp)}, {s(sRT)}, 3
    s_sub_u32 {s(sCG)}, {s(sT)}, {s(sTmp)}
    s_cmp_lt_u32 {s(sW)}, 4
    s_cbranch_scc1 {Lcomp}
    """)
    vDP = R.get(); vDW = [R.get() for _ in range(3)]; vDW2 = [R.get() for _ in range(3)]; vDX = [R.get() for _ in range(3)]
    A(f"""
    s_and_b32 {s(sW)}, {s(sW)}, 3
    s_lshl_b32 {s(sTmp)}, {s(sW)}, 3
    v_lshrrev_b32 {v(vT0)}, 3, {v(vLane)}
    v_add_u32 {v(vT0)}, {s(sTmp)}, {v(vT0)}
    v_bfe_u32 {v(vT1)}, {v(vT0)}, 1, 3
    v_and_b32 {v(vT2)}, 7, {v(vLane)}
    v_xor_b32 {v(vT1)}, {v(vT1)}, {v(vT2)}
    v_mul_u32_u24 {v(vT0)}, 1152, {v(vT0)}
    v_lshl_add_u32 {v(vDP)}, {v(vT1)}, 4, {v(vT0)}
    s_mul_i32 {s(sOX)}, {s(sRT)}, {32*1152}
    s_lshl_b32 m0, {s(sW)}, 10
    s_waitcnt lgkmcnt(0)
    """)
    A.srd_off(sPQ, sWS, WS_PQ, SZ_SD)
    for L in range(9):
        A(f"buffer_load_dwordx4 {v(vDP)}, {s(sPQ,4)}, {s(sOX)} offen lds")
        if L < 8: A(f"s_add_u32 m0, m0, 4096\ns_add_u32 {s(sOX)}, {s(sOX)}, 128")
    A(f"""
    s_mul_i32 {s(sTmp)}, {s(sCG)}, 384
    v_lshrrev_b32 {v(vG)}, 2, {v(vLane)}
    v_and_b32 {v(vC)}, 3, {v(vLane)}
    v_lshl_add_u32 {v(vC)}, {v(vC)}, 4, {s(sTmp)}
    """)
    A(f"""
    v_and_b32 {v(vT0)}, 3, {v(vG)}
    v_mul_u32_u24 {v(vT0)}, 1152, {v(vT0)}
    v_lshrrev_b32 {v(vT1)}, 2, {v(vG)}
    v_cmp_le_u32 vcc, 8, {v(vG)}
    v_lshl_add_u32 {v(vT0)}, {v(vT1)}, 6, {v(vT0)}
    v_add_u32 {v(vT0)}, {v(vT0)}, {v(vC)}
    v_cndmask_b32 {v(vT1)}, 0, 1, vcc
    v_mul_u32_u24 {v(vT1)}, {4*1152 - 6*64}, {v(vT1)}
    v_add_u32 {v(vDW[0])}, 1024, {v(vT0)}
    v_add_u32 {v(vDW[2])}, {4*1152 + 2*64 - 1024}, {v(vT0)}
    v_add_u32 {v(vT0)}, 256, {v(vT0)}
    v_add_u32 {v(vDW[1])}, {v(vT0)}, {v(vT1)}
    s_and_b32 {s(sTmp)}, {s(sW)}, 1
    s_lshl_b32 {s(sTmp)}, {s(sTmp)}, 5
    s_mul_i32 {s(sMW)}, {s(sW)}, 6144
    s_add_u32 {s(sMW)}, {s(sMW)}, {L_W}
    s_mul_i32 {s(sOW)}, {s(sW)}, {16*1152}
    s_mov_b32 {s(sWSl)}, 0
    """)
    for i in range(3): A(f"v_xor_b32 {v(vDW2[i])}, 32, {v(vDW[i])}\nv_xor_b32 {v(vDX[i])}, {s(sTmp)}, {v(vDW[i])}")
    A(f"s_sub_u32 {s(sWo)}, s46, 1024\ns_subb_u32 {s(sWo+1)}, s47, 0\ns_mov_b32 {s(sWo+2)}, {D_*D_*2+1024}\ns_mov_b32 {s(sWo+3)}, 0x20000")
    def dma_stage():
        A(f"s_add_u32 m0, {s(sWSl)}, {s(sMW)}\ns_add_u32 {s(sOW2)}, {s(sOW)}, {8*1152}")
        for i in range(3): A(f"buffer_load_dwordx4 {v(vDW[i])}, {s(sWo,4)}, {s(sOW)} offen offset:{i*1024} lds")
        A(f"s_add_u32 m0, m0, 3072\ns_add_u32 {s(sOW)}, {s(sOW)}, {64*1152}")
        for i in range(3): A(f"buffer_load_dwordx4 {v(vDW2[i])}, {s(sWo,4)}, {s(sOW2)} offen offset:{i*1024} lds")
        A(f"s_add_u32 {s(sWSl)}, {s(sWSl)}, {SLOT}")
    La = A.label("pa"); Lb = A.label("pb"); Ll = A.label("ld")
    A(f"{La}:")
    dma_stage()
    A(f"s_cmp_lt_u32 {s(sWSl)}, {2*SLOT}\ns_cbranch_scc1 {La}")
    P.stamp()
    A("s_waitcnt vmcnt(12)\ns_barrier")
    A(f"{Lb}:")
    dma_stage()
    A(f"s_cmp_lt_u32 {s(sWSl)}, {NS*SLOT}\ns_cbranch_scc1 {Lb}")
    A(f"s_sub_u32 {s(sX)}, s44, 1024\ns_subb_u32 {s(sX+1)}, s45, 0\ns_mov_b32 {s(sX+2)}, {SZ_SD+1024}\ns_mov_b32 {s(sX+3)}, 0x20000")
    A(f"""
    s_mov_b32 {s(sWSl)}, 0
    s_lshl_b32 {s(sTmp)}, {s(sRT)}, 2
    s_add_u32 {s(sTmp)}, {s(sTmp)}, {s(sW)}
    s_mul_i32 {s(sOX)}, {s(sTmp)}, {8*1152}
    s_waitcnt vmcnt(24)
    s_barrier
    {Ll}:
    s_waitcnt vmcnt(18)
    s_barrier
    """)
    dma_stage()
    A(f"s_cmp_lt_u32 {s(sWSl)}, {(NST-NS)*SLOT}\ns_cbranch_scc1 {Ll}")
    A(f"""
    s_mul_i32 {s(sTmp)}, {s(sW)}, 3072
    s_add_u32 {s(sTmp)}, {s(sTmp)}, {L_W + ((NST)%NS)*SLOT}
    s_waitcnt vmcnt(18)
    s_barrier
    s_mov_b32 m0, {s(sTmp)}
    s_nop 0
    """)
    for i in range(3): A(f"buffer_load_dwordx4 {v(vDX[i])}, {s(sX,4)}, {s(sOX)} offen offset:{i*1024} lds")
    for n in (15, 9, 3, 0): A(f"s_waitcnt vmcnt({n})\ns_barrier")
    if prof:
        P.stamp()
        P.flush(sWS, 20, None, wave_expr=f"s_add_u32 {s(sW)}, {s(sW)}, 4", wave_s2=sW)
    A("s_endpgm")
    hi_ld = max(R.hi, 30)
    R.release(m0_)
    vKA = [R.get() for _ in range(3)]
    vPA = [R.get() for _ in range(12)]
    vRX = [R.get(), R.get()]
    vRWb = [R.get() for _ in range(3)]; vRW = [R.get() for _ in range(3)]
    vO = R.get(); vSl = R.get(); vPl = R.get()
    AF = R.get(64, 4)
    RAW = R.get(80, 4)
    BF = R.get(48, 4)
    ACC = R.get(24, 4)
    P.n = 1 if prof else 0
    A(f"{Lcomp}:")
    A(f"""
    s_setprio 1
    v_lshrrev_b32 {v(vG)}, 4, {v(vLane)}
    v_and_b32 {v(vC)}, 15, {v(vLane)}
    s_mul_i32 {s(sTmp)}, {s(sW)}, {8*KV_HEAD}
    v_mul_u32_u24 {v(vT0)}, 320, {v(vG)}
    v_add_u32 {v(vT0)}, {s(sTmp)}, {v(vT0)}
    v_lshl_add_u32 {v(vKA[0])}, {v(vC)}, 4, {v(vT0)}
    v_and_b32 {v(vT1)}, 3, {v(vC)}
    v_add_u32 {v(vT1)}, 16, {v(vT1)}
    v_lshl_add_u32 {v(vKA[1])}, {v(vT1)}, 4, {v(vT0)}
    v_and_b32 {v(vT2)}, 1, {v(vG)}
    v_cmp_eq_u32 vcc, 1, {v(vT2)}
    v_lshrrev_b32 {v(vT2)}, 1, {v(vG)}
    v_mul_u32_u24 {v(vT2)}, {KV_HEAD}, {v(vT2)}
    v_cndmask_b32 {v(vT1)}, {v(vC)}, {v(vT1)}, vcc
    v_lshl_add_u32 {v(vT2)}, {v(vT1)}, 4, {v(vT2)}
    s_add_u32 {s(sTmp)}, {s(sTmp)}, 1280
    v_add_u32 {v(vKA[2])}, {s(sTmp)}, {v(vT2)}
    s_movk_i32 {s(sOW)}, {2*KV_HEAD}
    s_movk_i32 {s(sOW2)}, {4*KV_HEAD}
    s_movk_i32 {s(sOX)}, {6*KV_HEAD}
    s_waitcnt lgkmcnt(0)
    """)
    A.srd_off(sO_, sWS, WS_KV, 32*KV_HEAD)
    raw = lambda p, k: RAW + 20*p + 4*k
    for p in range(4):
        so = ["0", s(sOW), s(sOW2), s(sOX)][p]
        A(f"buffer_load_dwordx4 {v(raw(p,4),4)}, {v(vKA[2])}, {s(sO_,4)}, {so} offen")
        for k in range(4):
            A(f"buffer_load_dwordx4 {v(raw(p,k),4)}, {v(vKA[k&1])}, {s(sO_,4)}, {so} offen offset:{(k>>1)*KV_HEAD}")
    A(f"""
    v_lshrrev_b32 {v(vT0)}, 1, {v(vC)}
    v_lshlrev_b32 {v(vT0)}, 4, {v(vT0)}
    v_lshl_add_u32 {v(vT3)}, {v(vC)}, 7, {v(vT0)}
    s_mul_i32 {s(sTmp)}, {s(sW)}, 288
    v_lshl_add_u32 {v(vT2)}, {v(vG)}, 3, {s(sTmp)}
    s_movk_i32 {s(sTmp2)}, 127
    """)
    for p in range(4):
        for k in range(3):
            if k == 1:
                A(f"s_add_u32 {s(sCnt)}, {s(sTmp)}, {72*p+32}\nv_mov_b32 {v(vT0)}, {s(sCnt)}")
            else: A(f"v_add_u32 {v(vT0)}, {72*p + 20*k}, {v(vT2)}")
            A(f"""
            v_lshrrev_b32 {v(vT1)}, 7, {v(vT0)}
            v_bitop3_b32 {v(vT0)}, {v(vT0)}, {s(sTmp2)}, {v(vT3)} bitop3:0x6a
            v_lshl_add_u32 {v(vPA[3*p+k])}, {v(vT1)}, 12, {v(vT0)}
            """)
    A(f"""
    v_lshlrev_b32 {v(vT0)}, 4, {v(vG)}
    v_xor_b32 {v(vRX[0])}, {v(vT0)}, {v(vT3)}
    v_xor_b32 {v(vRX[1])}, 64, {v(vRX[0])}
    v_mul_u32_u24 {v(vT0)}, 3072, {v(vG)}
    v_bfe_u32 {v(vT1)}, {v(vLane)}, 2, 2
    v_lshl_add_u32 {v(vT0)}, {v(vT1)}, 6, {v(vT0)}
    v_add_u32 {v(vO)}, {L_W}, {v(vT0)}
    v_and_b32 {v(vT3)}, 1, {v(vG)}
    v_lshlrev_b32 {v(vT3)}, 5, {v(vT3)}
    v_and_b32 {v(vT2)}, 3, {v(vLane)}
    s_mul_i32 {s(sTmp)}, {s(sW)}, 96
    v_lshl_add_u32 {v(vT2)}, {v(vT2)}, 3, {s(sTmp)}
    s_movk_i32 {s(sTmp2)}, 63
    """)
    for T in range(3):
        A(f"""
        v_add_u32 {v(vT0)}, {32*T}, {v(vT2)}
        v_lshrrev_b32 {v(vT1)}, 6, {v(vT0)}
        v_bitop3_b32 {v(vT0)}, {v(vT0)}, {s(sTmp2)}, {v(vT3)} bitop3:0x6a
        v_lshl_add_u32 {v(vT0)}, {v(vT1)}, 8, {v(vT0)}
        v_add_u32 {v(vRWb[T])}, {v(vT0)}, {v(vO)}
        v_mov_b32 {v(vRW[T])}, {v(vRWb[T])}
        """)
    for g in range(4):
        m = 0xffff << (16*g)
        A(f"s_mov_b32 {s(sM[g])}, 0x{m & 0xffffffff:x}\ns_mov_b32 {s(sM[g]+1)}, 0x{m >> 32:x}")
    A(f"""
    s_mul_i32 {s(sTmp)}, {s(sRT)}, 36
    s_mul_i32 {s(sTmp2)}, {s(sCG)}, 12
    s_add_u32 {s(sTmp)}, {s(sTmp)}, {s(sTmp2)}
    s_mul_i32 {s(sTmp2)}, {s(sW)}, 3
    s_add_u32 {s(sTmp)}, {s(sTmp)}, {s(sTmp2)}
    s_lshl_b32 {s(sTmp)}, {s(sTmp)}, 10
    v_lshl_add_u32 {v(vO)}, {v(vLane)}, 4, {s(sTmp)}
    v_and_b32 {v(vT0)}, 31, {v(vLane)}
    v_lshlrev_b32 {v(vT0)}, 3, {v(vT0)}
    s_lshl_b32 {s(sTmp)}, {s(sT)}, 8
    v_add_u32 {v(vSl)}, {s(sTmp)}, {v(vT0)}
    v_lshrrev_b32 {v(vT1)}, 5, {v(vLane)}
    s_add_u32 {s(sTmp)}, {s(sCG)}, 1
    v_add_u32 {v(vT1)}, {s(sTmp)}, {v(vT1)}
    v_cmp_le_u32 vcc, 3, {v(vT1)}
    s_mul_i32 {s(sTmp)}, {s(sRT)}, 768
    v_lshl_add_u32 {v(vT0)}, {v(vT1)}, 8, {v(vT0)}
    v_cndmask_b32 {v(vT1)}, 0, 3, vcc
    v_lshlrev_b32 {v(vT1)}, 8, {v(vT1)}
    v_sub_u32 {v(vT0)}, {v(vT0)}, {v(vT1)}
    v_add_u32 {v(vPl)}, {s(sTmp)}, {v(vT0)}
    s_mov_b32 {s(sRS)}, 0
    s_mov_b32 {s(sCnt)}, 0
    """)
    for i in range(24): A(f"v_mov_b32 {v(ACC+i)}, 0")
    P.stamp()
    af = lambda p, k: AF + 16*p + 4*k
    for p in range(4):
        A(f"s_waitcnt vmcnt({5*(3-p)})")
        t = raw(p, 4)
        A(f"v_cvt_pk_bf16_f32 {v(t)}, {v(t)}, {v(t+1)}\nv_cvt_pk_bf16_f32 {v(t+1)}, {v(t+2)}, {v(t+3)}")
        for k in range(4):
            mo, to = (0, 2) if k < 2 else (2, 0)
            r = raw(p, k)
            A(f"v_cvt_pk_bf16_f32 {v(af(p,k)+mo)}, {v(r)}, {v(r+1)}\nv_cvt_pk_bf16_f32 {v(af(p,k)+mo+1)}, {v(r+2)}, {v(r+3)}")
            A(f"v_cndmask_b32 {v(af(p,k)+to)}, 0, {v(t)}, {s(sM[k],2)}\nv_cndmask_b32 {v(af(p,k)+to+1)}, 0, {v(t+1)}, {s(sM[k],2)}")
    P.stamp()
    A("s_barrier")
    units = [(p, st) for p in range(4) for st in range(2)]
    bfr = lambda u: BF + 6*u
    for u, (p, st) in enumerate(units):
        for k in range(3): A(f"ds_read_b64 {v(bfr(u)+2*k,2)}, {v(vPA[3*p+k])} offset:{st*2048}")
    ND = 5
    dd = lambda u, k: RAW + 16*(u % ND) + 4*k
    def omf(u):
        p, st = units[u]
        A(f"s_waitcnt lgkmcnt({min(15, 3*(7-u))})" if u < ND else "")
        for k in range(4):
            A(f"v_mfma_f32_16x16x32_bf16 {v(dd(u,k),4)}, {v(af(p,k),4)}, {v(bfr(u)+(0 if k < 2 else 2),4)}, 0")
    A(f"s_mov_b32 {s(sC)}, {fhex(1e-6)}")
    for u in range(ND): omf(u)
    A("s_waitcnt lgkmcnt(0)")
    for u, (p, st) in enumerate(units):
        e0, e1, o0, o1 = [dd(u, k) for k in range(4)]
        A(f"""
        v_add_f32 {v(e1+2)}, {s(sC)}, {v(e1+2)}
        v_add_f32 {v(o1+2)}, {s(sC)}, {v(o1+2)}
        v_rcp_f32 {v(e1+2)}, {v(e1+2)}
        v_rcp_f32 {v(o1+2)}, {v(o1+2)}
        s_nop 0
        v_pk_mul_f32 {v(e0,2)}, {v(e0,2)}, {v(e1+2,2)} op_sel_hi:[1,0]
        v_pk_mul_f32 {v(e0+2,2)}, {v(e0+2,2)}, {v(e1+2,2)} op_sel_hi:[1,0]
        v_pk_mul_f32 {v(e1,2)}, {v(e1,2)}, {v(e1+2,2)} op_sel_hi:[1,0]
        v_pk_mul_f32 {v(o0,2)}, {v(o0,2)}, {v(o1+2,2)} op_sel_hi:[1,0]
        v_pk_mul_f32 {v(o0+2,2)}, {v(o0+2,2)}, {v(o1+2,2)} op_sel_hi:[1,0]
        v_pk_mul_f32 {v(o1,2)}, {v(o1,2)}, {v(o1+2,2)} op_sel_hi:[1,0]
        v_cvt_pk_bf16_f32 {v(bfr(u))}, {v(e0)}, {v(e0+1)}
        v_cvt_pk_bf16_f32 {v(bfr(u)+1)}, {v(e0+2)}, {v(e0+3)}
        v_cvt_pk_bf16_f32 {v(bfr(u)+2)}, {v(e1)}, {v(e1+1)}
        v_cvt_pk_bf16_f32 {v(bfr(u)+3)}, {v(o1)}, {v(o1+1)}
        v_cvt_pk_bf16_f32 {v(bfr(u)+4)}, {v(o0)}, {v(o0+1)}
        v_cvt_pk_bf16_f32 {v(bfr(u)+5)}, {v(o0+2)}, {v(o0+3)}
        """)
        if u + ND < 8: omf(u + ND)
        for k in range(3): A(f"ds_write_b64 {v(vPA[3*p+k])}, {v(bfr(u)+2*k,2)} offset:{st*2048}")
    FX = [AF, AF + 8]; FW = [AF + 16, AF + 28]; IDN = AF + 40
    for i in range(8): A(f"v_mov_b32 {v(FX[1]+i)}, 0")
    for i in range(12): A(f"v_mov_b32 {v(FW[1]+i)}, 0")
    A(f"""
    v_lshrrev_b32 {v(vT0)}, 3, {v(vC)}
    v_sub_u32 {v(vT0)}, {v(vG)}, {v(vT0)}
    v_bfe_u32 {v(vT1)}, {v(vC)}, 1, 2
    v_lshl_add_u32 {v(vT0)}, {v(vT0)}, 1, {v(vT1)}
    v_and_b32 {v(vT2)}, 1, {v(vC)}
    v_lshlrev_b32 {v(vT2)}, 4, {v(vT2)}
    v_mov_b32 {v(vT3)}, 0x3f80
    v_lshlrev_b32 {v(vT2)}, {v(vT2)}, {v(vT3)}
    v_sub_u32 {v(vT3)}, {v(vT0)}, {v(vT1)}
    v_lshl_add_u32 {v(vT0)}, {v(vT3)}, 1, {v(vT1)}
    """)
    for st in range(2):
        for j in range(4):
            A(f"v_cmp_eq_u32 {s(sM[j],2)}, {8*st+j}, {v(vT0)}")
        for j in range(4):
            A(f"v_cndmask_b32 {v(IDN+4*st+j)}, 0, {v(vT2)}, {s(sM[j],2)}")
    P.stamp()
    acc = lambda T, st: ACC + (T*2 + st)*4
    def reads(buf, ks, x=True):
        X = [f"ds_read_b128 {v(FX[buf]+4*t,4)}, {v(vRX[ks])} offset:{t*2048}" for t in range(2)] if x else []
        W = [f"ds_read_b64_tr_b16 {v(FW[buf]+4*T+2*sec,2)}, {v(vRW[T])} offset:{ks*12288+sec*1536}" for T in range(3) for sec in range(2)]
        return W[:2] + X + W[2:]
    def mfmas(buf, fx=None):
        fx = FX[buf] if fx is None else fx
        return [f"v_mfma_f32_16x16x32_bf16 {v(acc(T,t),4)}, {v(fx+4*t,4)}, {v(FW[buf]+4*T,4)}, {v(acc(T,t),4)}" for T in range(3) for t in range(2)]
    Lk = A.label("k")
    A(f".p2align 6\n{Lk}:\ns_waitcnt lgkmcnt(0)\ns_barrier")
    pre = [f"s_add_u32 {s(sRS)}, {s(sRS)}, {SLOT}\ns_cmp_eq_u32 {s(sRS)}, {NS*SLOT}", f"s_cselect_b32 {s(sRS)}, 0, {s(sRS)}\ns_add_u32 {s(sCnt)}, {s(sCnt)}, 1"]
    for ins in front(mfmas(1), reads(0, 0) + pre, 2): A(ins)
    A("s_waitcnt lgkmcnt(0)")
    upd = [f"v_add_u32 {v(vRX[i])}, 4096, {v(vRX[i])}" for i in range(2)] + [f"v_add_u32 {v(vRW[i])}, {s(sRS)}, {v(vRWb[i])}" for i in range(3)]
    m = mfmas(0)
    for ins in front(m[:4], reads(1, 1), 2) + front(m[4:], upd + [f"s_cmp_lt_u32 {s(sCnt)}, {NST}"], 3): A(ins)
    A(f"s_cbranch_scc1 {Lk}\ns_waitcnt lgkmcnt(0)\ns_barrier")
    for ins in front(mfmas(1), reads(0, 0, x=False), 2): A(ins)
    A("s_waitcnt lgkmcnt(0)")
    for ins in mfmas(0, IDN): A(ins)
    P.stamp()
    SQ = RAW
    RD = RAW + 16
    A.srd_off(sX, sWS, WS_ST, 64*3*256)
    A(f"""
    v_lshrrev_b32 {v(vT0)}, 3, {v(vC)}
    v_lshlrev_b32 {v(vT0)}, 2, {v(vT0)}
    v_add_u32 {v(vT0)}, {v(vT0)}, {v(vG)}
    v_bfe_u32 {v(vT1)}, {v(vC)}, 2, 1
    v_lshl_add_u32 {v(vT0)}, {v(vT0)}, 1, {v(vT1)}
    s_lshl_b32 {s(sTmp)}, {s(sW)}, 8
    s_add_u32 {s(sTmp)}, {s(sTmp)}, {L_ST}
    v_lshl_add_u32 {v(vT0)}, {v(vT0)}, 4, {s(sTmp)}
    v_lshlrev_b32 {v(vT1)}, 3, {v(vLane)}
    v_add_u32 {v(vT1)}, {L_ST}, {v(vT1)}
    """)
    for st in range(2):
        for hf in range(2):
            a = [acc(T, st) + 2*hf for T in range(3)]
            sm, sq = SQ + 4*st + 2*hf, SQ + 8 + 4*st + 2*hf
            A(f"""
            v_pk_add_f32 {v(sm,2)}, {v(a[0],2)}, {v(a[1],2)}
            v_pk_mul_f32 {v(sq,2)}, {v(a[0],2)}, {v(a[0],2)}
            v_pk_add_f32 {v(sm,2)}, {v(sm,2)}, {v(a[2],2)}
            v_pk_fma_f32 {v(sq,2)}, {v(a[1],2)}, {v(a[1],2)}, {v(sq,2)}
            v_pk_fma_f32 {v(sq,2)}, {v(a[2],2)}, {v(a[2],2)}, {v(sq,2)}
            """)
    val = lambda stat, st, r: SQ + 8*stat + 4*st + r
    for stat in range(2):
        for r in range(4):
            A(f"v_add_f32_dpp {v(RD+4*stat+r)}, {v(val(stat,0,r))}, {v(val(stat,0,r))} row_ror:8 row_mask:0xf bank_mask:0x3")
    for stat in range(2):
        for r in range(4):
            A(f"v_add_f32_dpp {v(RD+4*stat+r)}, {v(val(stat,1,r))}, {v(val(stat,1,r))} row_ror:8 row_mask:0xf bank_mask:0xc")
    R2 = RD + 8
    for hi, mask in ((0, 0x5), (1, 0xa)):
        for r in range(2):
            for stat in range(2):
                x = RD + 4*stat + 2*hi + r
                A(f"v_add_f32_dpp {v(R2+2*r+stat)}, {v(x)}, {v(x)} row_half_mirror row_mask:0xf bank_mask:0x{mask:x}")
    for dpp in ["quad_perm:[1,0,3,2]", "quad_perm:[2,3,0,1]"]:
        for i in range(4): A(f"v_add_f32_dpp {v(R2+i)}, {v(R2+i)}, {v(R2+i)} {dpp} row_mask:0xf bank_mask:0xf")
    E = RAW + 32
    A(f"""
    ds_write_b128 {v(vT0)}, {v(R2,4)}
    s_waitcnt lgkmcnt(0)
    s_barrier
    ds_read_b64 {v(E,2)}, {v(vT1)}
    ds_read_b64 {v(E+2,2)}, {v(vT1)} offset:512
    s_mov_b32 {s(sCnt)}, 0
    s_waitcnt lgkmcnt(0)
    v_pk_add_f32 {v(E,2)}, {v(E,2)}, {v(E+2,2)}
    v_mov_b32 {v(E+2)}, {v(E)}
    v_mov_b32 {v(E+3)}, {v(E+1)}
    v_permlane32_swap_b32 {v(E)}, {v(E+2)}
    v_permlane32_swap_b32 {v(E+1)}, {v(E+3)}
    v_pk_add_f32 {v(E,2)}, {v(E,2)}, {v(E+2,2)}
    s_cmp_lg_u32 {s(sW)}, 0
    """)
    Lp = A.label("poll"); Lg = A.label("got")
    A(f"""
    s_cbranch_scc1 {Lp}
    s_mov_b32 exec_hi, 0
    buffer_store_dwordx2 {v(E,2)}, {v(vSl)}, {s(sX,4)}, 0 offen sc1
    s_mov_b32 exec_hi, -1
    {Lp}:
    buffer_load_dwordx2 {v(E+2,2)}, {v(vPl)}, {s(sX,4)}, 0 offen sc1
    s_add_u32 {s(sCnt)}, {s(sCnt)}, 1
    s_waitcnt vmcnt(0)
    v_max_u32 {v(E+4)}, {v(E+2)}, {v(E+3)}
    v_cmp_eq_u32 vcc, -1, {v(E+4)}
    s_cmp_gt_u32 {s(sCnt)}, 0x40000
    s_cbranch_scc1 {Lg}
    s_cbranch_vccnz {Lp}
    {Lg}:
    """)
    P.stamp()
    eps = 1e-5
    A(f"""
    v_mov_b32 {v(E+4)}, {v(E+2)}
    v_mov_b32 {v(E+5)}, {v(E+3)}
    s_mov_b32 {s(sC)}, {fhex(1.0/576)}
    s_mov_b32 {s(sC+1)}, {fhex(1.0/576)}
    v_permlane32_swap_b32 {v(E+2)}, {v(E+4)}
    v_permlane32_swap_b32 {v(E+3)}, {v(E+5)}
    v_pk_add_f32 {v(E,2)}, {v(E,2)}, {v(E+2,2)}
    v_pk_add_f32 {v(E,2)}, {v(E,2)}, {v(E+4,2)}
    v_pk_mul_f32 {v(E,2)}, {v(E,2)}, {s(sC,2)}
    s_mov_b32 {s(sC)}, {fhex(1.0+eps)}
    v_mov_b32 {v(E+2)}, {fhex(eps*eps)}
    v_fma_f32 {v(E+1)}, -{v(E)}, {v(E)}, {v(E+1)}
    v_max_f32 {v(E+1)}, 0, {v(E+1)}
    v_fma_f32 {v(E+1)}, {v(E+1)}, {s(sC)}, {v(E+2)}
    v_rsq_f32 {v(E+2)}, {v(E+1)}
    s_lshl_b32 {s(sTmp)}, {s(sW)}, 8
    s_add_u32 {s(sTmp)}, {s(sTmp)}, {L_AB}
    v_lshl_add_u32 {v(vT0)}, {v(vLane)}, 2, {s(sTmp)}
    v_mul_f32 {v(E+3)}, -{v(E)}, {v(E+2)}
    v_mul_f32 {v(E+1)}, {v(E+1)}, {v(E+2)}
    s_mov_b32 vcc_lo, 0
    s_mov_b32 vcc_hi, -1
    v_cndmask_b32 {v(E+2)}, {v(E+2)}, {v(E+3)}, vcc
    v_lshl_add_u32 {v(vT1)}, {v(vG)}, 4, {s(sTmp)}
    ds_write_b32 {v(vT0)}, {v(E+2)}
    """)
    AB = RAW
    for i in range(4): A(f"ds_read_b128 {v(AB+4*i,4)}, {v(vT1)} offset:{64*i}")
    Lms = A.label("ms")
    A.srd_off(sO_, sWS, WS_HP, SZ_SD)
    A(f"s_or_b32 {s(sTmp)}, {s(sW)}, {s(sCG)}\ns_cbranch_scc1 {Lms}")
    A.srd_off(sX, sWS, WS_MS, S_*8)
    A(f"""
    s_lshl_b32 {s(sTmp)}, {s(sRT)}, 8
    v_lshl_add_u32 {v(vT0)}, {v(vLane)}, 3, {s(sTmp)}
    s_mov_b32 exec_hi, 0
    buffer_store_dwordx2 {v(E,2)}, {v(vT0)}, {s(sX,4)}, 0 offen sc1
    s_mov_b32 exec_hi, -1
    {Lms}:
    s_waitcnt lgkmcnt(0)
    """)
    for T in range(3):
        O = RAW + 40 + 4*T
        for st in range(2):
            for hf in range(2):
                a = acc(T, st) + 2*hf
                A(f"v_pk_fma_f32 {v(a,2)}, {v(a,2)}, {v(AB+4*st+2*hf,2)}, {v(AB+8+4*st+2*hf,2)}")
        for st in range(2):
            for hf in range(2):
                a = acc(T, st) + 2*hf
                A(f"v_cvt_pk_bf16_f32 {v(O+2*st+hf)}, {v(a)}, {v(a+1)}")
        A(f"buffer_store_dwordx4 {v(O,4)}, {v(vO)}, {s(sO_,4)}, 0 offen offset:{1024*T} sc1")
    if prof:
        A("s_waitcnt vmcnt(0)")
        P.stamp()
        P.flush(sWS, RAW, sW)
    A(f"s_endpgm")
    grid = NWG
    if svc:
        A(f"{Lsvc}:")
        grid = svc(A, Lend, NWG)
    A(f"{Lend}:\ns_endpgm")
    return A.text(), kernel_desc(name, max(R.hi, hi_ld)), f"; @launch kernel={name} grid=({grid},1,1) block=(512,1,1) lds={LDS}"

if __name__ == "__main__":
    for T in range(192): assert (T*21846) >> 16 == T//3, T
    from k1 import gen_k1
    open("k2_test.s", "w").write(assemble_file([gen_k1(prof=True), gen_k2(prof=True)]))
```

```python
from common import *

def gen_k3(name="k3_kernel", prof=False, NS=5, kidx=2, store_flags="sc1", rd_per_gap=2, setprio=True, no_mfma=False, no_dma=False, no_rd=False, no_bar=False, same_tile=False, lin_a=False, NWG=216, mix=False, ldA='', ldB='', svc=None):
    A = Asm()
    KS = 2
    NST = 64 // KS
    SLOT = 28672
    P = Prof(A, prof, kidx, 60)
    sW1, sHP, sU, sB1 = 8, 12, 16, 20
    sWS = 4
    sT, sFT, sDG, sW, sWF, sWD = 24, 25, 26, 27, 28, 29
    sOA, sOB, sRS, sWSl, sCnt, sM0A, sTmp, sM0B = 30, 31, 32, 33, 34, 35, 36, 37
    sC2 = 42
    R = Alloc(1)
    vLane = R.get(); vT0 = R.get(); vT1 = R.get(); vT2 = R.get()
    vDA = [R.get() for _ in range(4)]; vDB = R.get()
    vRAb = [R.get(), R.get()]; vRBb = R.get()
    vRA = [R.get(), R.get()]; vRB = R.get()
    vST = R.get()
    FA = [R.get(16, 4), R.get(16, 4)]
    FB = [R.get(12, 4), R.get(12, 4)]
    ACC = R.get(48, 4)
    TMP = R.get(24, 4)
    def acc(t, j): return ACC + (t*3 + j)*4

    A(kernel_header(name))
    Lend = A.label("end"); Lcomp = A.label("comp")
    Lsvc = A.label("svc")
    A(f"s_cmp_ge_u32 s2, {NWG}\ns_cbranch_scc1 {Lsvc if svc else Lend}")
    A(f"s_load_dwordx4 {s(44,4)}, s[0:1], {KA_W1}")
    A(f"s_load_dwordx2 {s(sWS,2)}, s[0:1], {KA_WS}")
    P.stamp()
    if prof: A(f"s_memtime {s(80,2)}")
    A(f"""
    v_lshrrev_b32 {v(vT0)}, 6, v0
    s_and_b32 {s(sT)}, s2, 7
    s_mul_i32 {s(sT)}, {s(sT)}, 27
    v_readfirstlane_b32 {s(sW)}, {v(vT0)}
    s_lshr_b32 {s(sTmp)}, s2, 3
    s_add_u32 {s(sT)}, {s(sT)}, {s(sTmp)}
    s_mul_i32 {s(sFT)}, {s(sT)}, 43691
    s_lshr_b32 {s(sFT)}, {s(sFT)}, 18
    s_mul_i32 {s(sTmp)}, {s(sFT)}, 6
    s_sub_u32 {s(sDG)}, {s(sT)}, {s(sTmp)}
    v_and_b32 {v(vLane)}, 63, v0
    s_bfe_u32 {s(sWF)}, {s(sW)}, 0x10001
    s_and_b32 {s(sWD)}, {s(sW)}, 1
    s_cmp_lt_u32 {s(sW)}, 4
    s_cbranch_scc1 {Lcomp}
    """)
    if same_tile: A(f"s_and_b32 {s(sFT)}, s2, 7\ns_mov_b32 {s(sDG)}, 0")
    A(f"""
    s_and_b32 {s(sW)}, {s(sW)}, 3
    v_bfe_u32 {v(vT0)}, {v(vLane)}, 2, 2
    v_mul_u32_u24 {v(vT0)}, 9216, {v(vT0)}
    v_lshrrev_b32 {v(vT1)}, 4, {v(vLane)}
    v_lshl_add_u32 {v(vT0)}, {v(vT1)}, 6, {v(vT0)}
    {f"v_lshrrev_b32 {v(vT1)}, 5, {v(vLane)}" if mix else ""}
    {f"v_mul_u32_u24 {v(vT1)}, {36*128-128}, {v(vT1)}" if mix else ""}
    {f"v_add_u32 {v(vT0)}, {v(vT1)}, {v(vT0)}" if mix else ""}
    v_and_b32 {v(vT1)}, 3, {v(vLane)}
    v_xor_b32 {v(vT2)}, 2, {v(vT1)}
    s_mul_i32 {s(sTmp)}, {s(sW)}, {16*9216}
    s_lshl_b32 {s(sOA)}, {s(sFT)}, {7 if mix else 8}
    s_add_u32 {s(sTmp)}, {s(sTmp)}, {s(sOA)}
    v_add_u32 {v(vT0)}, {s(sTmp)}, {v(vT0)}
    v_lshl_add_u32 {v(vDA[0])}, {v(vT1)}, 4, {v(vT0)}
    v_lshl_add_u32 {v(vDA[1])}, {v(vT2)}, 4, {v(vT0)}
    v_add_u32 {v(vDA[2])}, {2*(4*9216-1024)}, {v(vDA[0])}
    v_add_u32 {v(vDA[1])}, {4*9216-1024}, {v(vDA[1])}
    v_add_u32 {v(vDA[3])}, {2*(4*9216-1024)}, {v(vDA[1])}
    """)
    if lin_a:
        A(f"s_mul_i32 {s(sTmp)}, {s(sFT)}, {64*9216*32//36//1024*1024}\ns_lshl_b32 {s(sOA)}, {s(sW)}, 12\ns_add_u32 {s(sTmp)}, {s(sTmp)}, {s(sOA)}")
        for i in range(4): A(f"v_lshl_add_u32 {v(vDA[i])}, {v(vLane)}, 4, {s(sTmp)}")
    A(f"""
    s_mul_i32 {s(sTmp)}, {s(sWF)}, 36
    s_mul_i32 {s(sOB)}, {s(sWD)}, 3
    s_add_u32 {s(sTmp)}, {s(sTmp)}, {s(sOB)}
    s_mul_i32 {s(sOB)}, {s(sDG)}, 6
    s_add_u32 {s(sTmp)}, {s(sTmp)}, {s(sOB)}
    s_lshl_b32 {s(sTmp)}, {s(sTmp)}, 10
    v_lshl_add_u32 {v(vDB)}, {v(vLane)}, 4, {s(sTmp)}
    s_mov_b32 {s(sOA)}, 0
    s_mov_b32 {s(sOB)}, 0
    s_lshl_b32 {s(sM0A)}, {s(sW)}, 12
    s_mul_i32 {s(sM0B)}, {s(sW)}, 3072
    s_add_u32 {s(sM0B)}, {s(sM0B)}, 16384
    s_mov_b32 {s(sWSl)}, 0
    s_mov_b32 {s(sCnt)}, 0
    s_waitcnt lgkmcnt(0)
    """)
    A.srd(sW1, 44, S_*F_*2)
    A.srd_off(sHP, sWS, WS_HP, SZ_SD)

    def dma_stage():
        A(f"s_add_u32 m0, {s(sWSl)}, {s(sM0A)}\ns_add_u32 {s(sTmp)}, {s(sWSl)}, {s(sM0B)}")
        for i in range(4):
            A(f"buffer_load_dwordx4 {v(vDA[i])}, {s(sW1,4)}, {s(sOA)} offen offset:{i*1024} {ldA} lds")
        A(f"s_mov_b32 m0, {s(sTmp)}\ns_add_u32 {s(sOA)}, {s(sOA)}, {16384 if lin_a else 64*9216}")
        for i in range(3):
            A(f"buffer_load_dwordx4 {v(vDB)}, {s(sHP,4)}, {s(sOB)} offen offset:{i*1024} {ldB} lds")
        A(f"s_add_u32 {s(sOB)}, {s(sOB)}, {2*36*1024}")
        A(f"s_add_u32 {s(sWSl)}, {s(sWSl)}, {SLOT}")
    Lp = A.label("pro"); Ll = A.label("ld"); Lt = A.label("ldt")
    A(f"{Lp}:")
    dma_stage()
    A(f"s_cmp_lt_u32 {s(sWSl)}, {(NS-1)*SLOT}\ns_cbranch_scc1 {Lp}")
    P.stamp()
    if no_dma:
        dma_stage()
        A("s_waitcnt vmcnt(0)")
        for i in range(32 if not no_bar else 1): A("s_barrier")
        A("s_endpgm")
    A(f"{Ll}:")
    A(f"s_waitcnt vmcnt({7*(NS-2)})")
    if not no_bar: A("s_barrier")
    if prof:
        Lx = A.label("x")
        A(f"s_cmp_lg_u32 {s(sCnt)}, 4\ns_cbranch_scc1 {Lx}\ns_memtime {s(80,2)}\n{Lx}:")
    dma_stage()
    A(f"""
    s_cmp_eq_u32 {s(sWSl)}, {NS*SLOT}
    s_cselect_b32 {s(sWSl)}, 0, {s(sWSl)}
    s_add_u32 {s(sCnt)}, {s(sCnt)}, 1
    s_cmp_lt_u32 {s(sCnt)}, {NST-NS+1}
    s_cbranch_scc1 {Ll}
    """)
    for i in range(NS-2, -1, -1):
        A(f"s_waitcnt vmcnt({7*i})")
        if not no_bar: A("s_barrier")
        if prof and i == NS-2: A(f"s_memtime {s(82,2)}")
    if prof:
        P.stamp()
        A(f"s_waitcnt lgkmcnt(0)\ns_sub_u32 {s(60+2*P.n)}, s82, s80")
        P.n += 1
        P.flush(sWS, TMP, None, wave_expr=f"s_add_u32 {s(sW)}, {s(sW)}, 4", wave_s2=sW)
    A("s_endpgm")
    P.n = 1 if prof else 0
    A(f"{Lcomp}:")
    if setprio: A("s_setprio 1")
    A(f"""
    v_lshrrev_b32 {v(vT1)}, 4, {v(vLane)}
    s_lshl_b32 {s(sTmp)}, {s(sFT)}, {7 if mix else 8}
    s_mul_i32 {s(sCnt)}, {s(sWF)}, {36*128 if mix else 128}
    s_add_u32 {s(sTmp)}, {s(sTmp)}, {s(sCnt)}
    v_lshl_add_u32 {v(vT0)}, {v(vT1)}, 3, {s(sTmp)}
    s_waitcnt lgkmcnt(0)
    """)
    A.srd(sB1, 46, F_*2)
    for t in range(4):
        A(f"buffer_load_dwordx2 {v(TMP+2*t,2)}, {v(vT0)}, {s(sB1,4)}, 0 offen offset:{32*t}")
    A.srd_off(sU, sWS, WS_U, SZ_U)
    A(f"""
    v_bfe_u32 {v(vT0)}, {v(vLane)}, 2, 2
    v_lshlrev_b32 {v(vT0)}, 6, {v(vT0)}
    v_lshl_add_u32 {v(vT0)}, {v(vT1)}, 10, {v(vT0)}
    v_and_b32 {v(vT2)}, 3, {v(vLane)}
    v_lshl_add_u32 {v(vT0)}, {v(vT2)}, 3, {v(vT0)}
    s_lshl_b32 {s(sTmp)}, {s(sWF)}, 9
    v_add_u32 {v(vT0)}, {s(sTmp)}, {v(vT0)}
    v_and_b32 {v(vT1)}, 1, {v(vT1)}
    v_lshl_add_u32 {v(vRAb[0])}, {v(vT1)}, 5, {v(vT0)}
    v_xor_b32 {v(vRAb[1])}, 32, {v(vRAb[0])}
    s_mul_i32 {s(sTmp)}, {s(sWD)}, 3072
    s_add_u32 {s(sTmp)}, {s(sTmp)}, 16384
    v_lshl_add_u32 {v(vRBb)}, {v(vLane)}, 4, {s(sTmp)}
    """)
    A(f"""
    s_mul_i32 {s(sTmp)}, {s(sWF)}, {36 if mix else 1}
    s_lshl_b32 {s(sCnt)}, {s(sFT)}, {0 if mix else 1}
    s_add_u32 {s(sTmp)}, {s(sTmp)}, {s(sCnt)}
    s_mul_i32 {s(sTmp)}, {s(sTmp)}, 72
    s_mul_i32 {s(sCnt)}, {s(sDG)}, 6
    s_add_u32 {s(sTmp)}, {s(sTmp)}, {s(sCnt)}
    s_mul_i32 {s(sCnt)}, {s(sWD)}, 3
    s_add_u32 {s(sTmp)}, {s(sTmp)}, {s(sCnt)}
    s_lshl_b32 {s(sTmp)}, {s(sTmp)}, 10
    v_lshl_add_u32 {v(vST)}, {v(vLane)}, 4, {s(sTmp)}
    s_mov_b32 {s(sRS)}, 0
    s_mov_b32 {s(sCnt)}, 0
    """)
    for i in range(16): A(f"v_mov_b32 {v(FA[1]+i)}, 0")
    for i in range(12): A(f"v_mov_b32 {v(FB[1]+i)}, 0")
    A("s_waitcnt vmcnt(0)")
    for t in range(4):
        for j in range(3):
            A(f"v_lshlrev_b32 {v(acc(t,j)+0)}, 16, {v(TMP+2*t)}")
            A(f"v_and_b32 {v(acc(t,j)+1)}, 0xffff0000, {v(TMP+2*t)}")
            A(f"v_lshlrev_b32 {v(acc(t,j)+2)}, 16, {v(TMP+2*t+1)}")
            A(f"v_and_b32 {v(acc(t,j)+3)}, 0xffff0000, {v(TMP+2*t+1)}")
    P.stamp()
    def reads(buf, ks):
        nonlocal no_rd
        L = []
        for t in range(4):
            for sec in range(2):
                L.append(f"ds_read_b64_tr_b16 {v(FA[buf]+4*t+2*sec,2)}, {v(vRA[t&1])} offset:{ks*8192+sec*4096+(t>>1)*256}")
        B = [f"ds_read_b128 {v(FB[buf]+4*j,4)}, {v(vRB)} offset:{ks*6144+j*1024}" for j in range(3)]
        if no_rd == 'A': return B
        if no_rd == 'B': return L
        if no_rd: return []
        return L[0:2] + B + L[2:]
    def mfmas(buf):
        if no_mfma: return ["s_nop 0"]*12
        return [f"v_mfma_f32_16x16x32_bf16 {v(acc(t,j),4)}, {v(FA[buf]+4*t,4)}, {v(FB[buf]+4*j,4)}, {v(acc(t,j),4)}" for t in range(4) for j in range(3)]
    def front(prim, fill, k):
        out = []; j = 0
        for p in prim:
            out.append(p)
            out += fill[j:j+k]; j += k
        return out + fill[j:]
    Lk = A.label("k")
    A(f"""
    v_mov_b32 {v(vRA[0])}, {v(vRAb[0])}
    v_mov_b32 {v(vRA[1])}, {v(vRAb[1])}
    v_mov_b32 {v(vRB)}, {v(vRBb)}
    """)
    if no_dma and no_bar: A("s_barrier")
    if no_rd:
        sv = no_rd; no_rd = False
        for ins in reads(0,0)+reads(1,1): A(ins)
        no_rd = sv
        A("s_waitcnt lgkmcnt(0)")

    A(f".p2align 6\n{Lk}:")
    A(f"s_waitcnt lgkmcnt(0)")
    if not no_bar: A("s_barrier")
    if prof:
        Lx = A.label("x")
        A(f"s_cmp_lg_u32 {s(sCnt)}, 0\ns_cbranch_scc1 {Lx}\ns_memtime {s(84,2)}\ns_memrealtime {s(88,2)}\n{Lx}:")
    for ins in front(mfmas(1), reads(0, 0), rd_per_gap): A(ins)
    A("s_waitcnt lgkmcnt(0)")
    tail = [f"s_add_u32 {s(sRS)}, {s(sRS)}, {SLOT}", f"s_cmp_eq_u32 {s(sRS)}, {NS*SLOT}", f"s_cselect_b32 {s(sRS)}, 0, {s(sRS)}",
            f"v_add_u32 {v(vRA[0])}, {s(sRS)}, {v(vRAb[0])}", f"v_add_u32 {v(vRA[1])}, {s(sRS)}, {v(vRAb[1])}", f"v_add_u32 {v(vRB)}, {s(sRS)}, {v(vRBb)}",
            f"s_add_u32 {s(sCnt)}, {s(sCnt)}, 1", f"s_cmp_lt_u32 {s(sCnt)}, {NST}"]
    for ins in front(mfmas(0), reads(1, 1) + tail, rd_per_gap): A(ins)
    A(f"s_cbranch_scc1 {Lk}")
    A("s_waitcnt lgkmcnt(0)")
    for ins in mfmas(1): A(ins)
    if prof: A(f"s_memtime {s(86,2)}\ns_memrealtime {s(90,2)}")
    P.stamp()
    A(f"s_mov_b32 {s(sC2)}, {fhex(GELU_C2)}\ns_mov_b32 {s(sC2+1)}, {fhex(GELU_C2)}")
    vC1 = FA[0]
    A(f"v_mov_b32 {v(vC1)}, {fhex(GELU_C1)}\nv_mov_b32 {v(vC1+1)}, {fhex(GELU_C1)}\ns_nop 4")
    for p in range(2):
        for j in range(3):
            xs = [acc(2*p, j), acc(2*p, j)+2, acc(2*p+1, j), acc(2*p+1, j)+2]
            T = TMP + ((p*3+j) & 1)*12
            for i, x in enumerate(xs): A(f"v_pk_mul_f32 {v(T+2*i,2)}, {v(x,2)}, {v(x,2)}")
            for i, x in enumerate(xs): A(f"v_pk_fma_f32 {v(T+2*i,2)}, {v(T+2*i,2)}, {s(sC2,2)}, {v(vC1,2)}")
            for i, x in enumerate(xs): A(f"v_pk_mul_f32 {v(T+2*i,2)}, {v(T+2*i,2)}, {v(x,2)}")
            for i in range(8): A(f"v_exp_f32 {v(T+i)}, {v(T+i)}")
            for i in range(4): A(f"v_pk_add_f32 {v(T+2*i,2)}, {v(T+2*i,2)}, 1.0 op_sel_hi:[1,0]")
            for i in range(8): A(f"v_rcp_f32 {v(T+i)}, {v(T+i)}")
            for i, x in enumerate(xs): A(f"v_pk_mul_f32 {v(T+2*i,2)}, {v(T+2*i,2)}, {v(x,2)}")
            for i in range(4): A(f"v_cvt_pk_bf16_f32 {v(T+8+i)}, {v(T+2*i)}, {v(T+2*i+1)}")
            so = p*36*1024
            if so: A(f"s_mov_b32 {s(sTmp)}, {so}")
            A(f"buffer_store_dwordx4 {v(T+8,4)}, {v(vST)}, {s(sU,4)}, {s(sTmp) if so else 0} offen offset:{j*1024} {store_flags}")
    if prof:
        P.stamp()
        A("s_waitcnt vmcnt(0)")
        P.stamp()
        A(f"s_memtime {s(82,2)}\ns_waitcnt lgkmcnt(0)\ns_sub_u32 {s(60+2*P.n)}, s82, s80")
        P.n += 1
        A(f"s_sub_u32 {s(60+2*P.n)}, s86, s84")
        P.n += 1
        A(f"s_sub_u32 {s(60+2*P.n)}, s90, s88")
        P.n += 1
        P.flush(sWS, TMP, sW)
    grid = NWG
    if svc:
        A(f"s_endpgm\n{Lsvc}:")
        grid = svc(A, Lend, NWG)
    A(f"{Lend}:\ns_endpgm")
    return A.text(), kernel_desc(name, R.hi), f"; @launch kernel={name} grid=({grid},1,1) block=(512,1,1) lds={NS*SLOT}"

if __name__ == "__main__":
    for T in range(216): assert (T*43691) >> 18 == T//6
    open("k3_test.s", "w").write(assemble_file([gen_k3(prof=True)]))
```

```python
from common import *

PART_REG = 2560
def gen_k4(name="k4_kernel", prof=False, NS=4, kidx=3, out_flags="", rd_per_gap=1, setprio=True, no_xchg=False, light=True, sleep=1, st_flags='sc1', order='tj', skipA=0, skipB=False, no_dma=False):
    A = Asm()
    NST = 18
    SA, SB = 18432, 16384
    SLOT = SA + SB
    NWG = 256
    P = Prof(A, prof, kidx, 60)
    sWS = 4
    sSRC, sHP, sPT, sOUT, sSTt = 8, 12, 16, 20, 52
    sQ, sST, sDG, sW = 24, 25, 26, 27
    sO, sO2, sO3, sRS, sWSl, sCnt, sM0, sTmp, sTmp2 = 28, 29, 30, 31, 32, 33, 34, 35, 36
    sSpin = 37
    R = Alloc(1)
    vLane = R.get(); vT0 = R.get(); vT1 = R.get(); vT2 = R.get()
    vD = [R.get() for _ in range(4)]
    vRAb = R.get(); vRBb = [R.get(), R.get()]
    vRA = R.get(); vRB = [R.get(), R.get()]
    vPS = R.get(); vPL = R.get(); vOut = R.get(); vOut1 = R.get()
    vSig = R.get(2); vB2 = R.get()
    HF = R.get(20, 4)
    FA = [R.get(36, 4), R.get(36, 4)]
    FB = [R.get(8, 4), R.get(8, 4)]
    ACC = R.get(72, 4)
    def acc(t, j): return ACC + (j*9 + t)*4

    A(kernel_header(name))
    Lend = A.label("end"); Lcomp = A.label("comp"); LldB = A.label("ldB")
    A(f"s_cmp_ge_u32 s2, {NWG}\ns_cbranch_scc1 {Lend}")
    A(f"s_load_dwordx4 {s(44,4)}, s[0:1], {KA_W2}")
    A(f"s_load_dwordx2 {s(sWS,2)}, s[0:1], {KA_WS}")
    A(f"s_load_dwordx2 {s(48,2)}, s[0:1], {KA_OUT}")
    P.stamp()
    if prof: A(f"s_memtime {s(80,2)}")
    A(f"""
    v_lshrrev_b32 {v(vT0)}, 6, v0
    s_bfe_u32 {s(sQ)}, s2, 0x20001
    s_and_b32 {s(sST)}, s2, 1
    v_readfirstlane_b32 {s(sW)}, {v(vT0)}
    s_lshl_b32 {s(sST)}, {s(sST)}, 3
    s_lshr_b32 {s(sTmp)}, s2, 5
    s_add_u32 {s(sST)}, {s(sST)}, {s(sTmp)}
    s_bfe_u32 {s(sDG)}, s2, 0x20003
    v_and_b32 {v(vLane)}, 63, v0
    s_mov_b32 {s(sWSl)}, 0
    s_mov_b32 {s(sCnt)}, 0
    s_cmp_lt_u32 {s(sW)}, 4
    s_cbranch_scc1 {Lcomp}
    s_cmp_ge_u32 {s(sW)}, 6
    s_cbranch_scc1 {LldB}
    """)
    def loader(npieces, stage_fn, wexpr):
        Lp = A.label("pro"); Ll = A.label("ld")
        A(f"{Lp}:")
        stage_fn()
        A(f"s_cmp_lt_u32 {s(sWSl)}, {(NS-1)*SLOT}\ns_cbranch_scc1 {Lp}")
        P.n = 1 if prof else 0
        P.stamp()
        if skipA or skipB: A(f"s_waitcnt vmcnt({npieces*(NS-2)})\ns_barrier")
        if no_dma:
            stage_fn()
            A("s_waitcnt vmcnt(0)")
            for i in range(NST): A("s_barrier")
            A("s_endpgm")
        A(f"{Ll}:")
        A(f"s_waitcnt vmcnt({npieces*(NS-2)})\ns_barrier")
        stage_fn()
        A(f"""
        s_cmp_eq_u32 {s(sWSl)}, {NS*SLOT}
        s_cselect_b32 {s(sWSl)}, 0, {s(sWSl)}
        s_add_u32 {s(sCnt)}, {s(sCnt)}, 1
        s_cmp_lt_u32 {s(sCnt)}, {NST-NS+1}
        s_cbranch_scc1 {Ll}
        """)
        for i in range(NS-2, -1, -1):
            A(f"s_waitcnt vmcnt({npieces*i})\ns_barrier")
        if prof:
            P.stamp()
            P.flush(sWS, FA[0], sW)
        A("s_endpgm")
    A(f"""
    s_and_b32 {s(sTmp2)}, {s(sW)}, 1
    s_mul_i32 {s(sTmp)}, {s(sQ)}, 36
    s_add_u32 {s(sTmp)}, {s(sTmp)}, {s(sTmp2)}
    s_mul_i32 {s(sTmp)}, {s(sTmp)}, 36
    s_mul_i32 {s(sO)}, {s(sDG)}, 9
    s_add_u32 {s(sTmp)}, {s(sTmp)}, {s(sO)}
    s_lshl_b32 {s(sTmp)}, {s(sTmp)}, 10
    v_lshl_add_u32 {v(vD[0])}, {v(vLane)}, 4, {s(sTmp)}
    s_mul_i32 {s(sM0)}, {s(sTmp2)}, 9216
    s_mov_b32 {s(sO)}, 0
    s_waitcnt lgkmcnt(0)
    """)
    A.srd_off(sSRC, sWS, WS_U, SZ_U)
    def stageA():
        A(f"s_add_u32 m0, {s(sWSl)}, {s(sM0)}\ns_add_u32 {s(sO2)}, {s(sO)}, 4096")
        for i in range(4): A(f"buffer_load_dwordx4 {v(vD[0])}, {s(sSRC,4)}, {s(sO)} offen offset:{i*1024} lds")
        A(f"s_add_u32 m0, m0, 4096\ns_add_u32 {s(sO3)}, {s(sO)}, 8192")
        for i in range(4): A(f"buffer_load_dwordx4 {v(vD[0])}, {s(sSRC,4)}, {s(sO2)} offen offset:{i*1024} lds")
        A(f"s_add_u32 m0, m0, 4096\ns_add_u32 {s(sO)}, {s(sO)}, {2*36*1024}")
        A(f"buffer_load_dwordx4 {v(vD[0])}, {s(sSRC,4)}, {s(sO3)} offen lds")
        A(f"s_add_u32 {s(sWSl)}, {s(sWSl)}, {SLOT}")
    loader(9, stageA, None)
    A(f"{LldB}:")
    A(f"""
    s_and_b32 {s(sTmp2)}, {s(sW)}, 1
    v_bfe_u32 {v(vT0)}, {v(vLane)}, 2, 2
    v_lshlrev_b32 {v(vT0)}, 12, {v(vT0)}
    v_lshrrev_b32 {v(vT1)}, 4, {v(vLane)}
    v_lshl_add_u32 {v(vT0)}, {v(vT1)}, 6, {v(vT0)}
    v_and_b32 {v(vT1)}, 3, {v(vLane)}
    v_xor_b32 {v(vT2)}, 2, {v(vT1)}
    s_mul_i32 {s(sTmp)}, {s(sQ)}, {1152*4096}
    s_lshl_b32 {s(sO)}, {s(sTmp2)}, 17
    s_add_u32 {s(sTmp)}, {s(sTmp)}, {s(sO)}
    s_lshl_b32 {s(sO)}, {s(sST)}, 8
    s_add_u32 {s(sTmp)}, {s(sTmp)}, {s(sO)}
    v_add_u32 {v(vT0)}, {s(sTmp)}, {v(vT0)}
    v_lshl_add_u32 {v(vD[0])}, {v(vT1)}, 4, {v(vT0)}
    v_lshl_add_u32 {v(vD[1])}, {v(vT2)}, 4, {v(vT0)}
    v_add_u32 {v(vD[2])}, {2*(16384-1024)}, {v(vD[0])}
    v_add_u32 {v(vD[1])}, {16384-1024}, {v(vD[1])}
    v_add_u32 {v(vD[3])}, {2*(16384-1024)}, {v(vD[1])}
    s_lshl_b32 {s(sM0)}, {s(sTmp2)}, 13
    s_add_u32 {s(sM0)}, {s(sM0)}, {SA}
    s_mov_b32 {s(sO)}, 0
    s_waitcnt lgkmcnt(0)
    """)
    A.srd(sSRC, 44, F_*S_*2)
    def stageB():
        A(f"s_add_u32 m0, {s(sWSl)}, {s(sM0)}\ns_add_u32 {s(sO2)}, {s(sO)}, {4*16384}")
        for i in range(4): A(f"buffer_load_dwordx4 {v(vD[i])}, {s(sSRC,4)}, {s(sO)} offen offset:{i*1024} lds")
        A(f"s_add_u32 m0, m0, 4096\ns_add_u32 {s(sO)}, {s(sO)}, {64*4096}")
        for i in range(4): A(f"buffer_load_dwordx4 {v(vD[i])}, {s(sSRC,4)}, {s(sO2)} offen offset:{i*1024} lds")
        A(f"s_add_u32 {s(sWSl)}, {s(sWSl)}, {SLOT}")
    loader(8, stageB, None)
    P.n = 1 if prof else 0
    A(f"{Lcomp}:")
    if setprio: A("s_setprio 1")
    sJS, sT0 = 38, 39
    A(f"""
    s_lshr_b32 {s(sJS)}, {s(sQ)}, 1
    s_and_b32 {s(sT0)}, {s(sQ)}, 1
    s_mul_i32 {s(sT0)}, {s(sT0)}, 5
    v_lshrrev_b32 {v(vT1)}, 4, {v(vLane)}
    v_and_b32 {v(vT2)}, 15, {v(vLane)}
    s_lshl_b32 {s(sTmp)}, {s(sST)}, 2
    s_add_u32 {s(sTmp)}, {s(sTmp)}, {s(sW)}
    s_lshl_b32 {s(sTmp2)}, {s(sTmp)}, 1
    s_add_u32 {s(sTmp2)}, {s(sTmp2)}, {s(sJS)}
    s_lshl_b32 {s(sTmp2)}, {s(sTmp2)}, 4
    v_add_u32 {v(vT2)}, {s(sTmp2)}, {v(vT2)}
    s_mul_i32 {s(sTmp)}, {s(sTmp)}, 36
    s_mul_i32 {s(sTmp2)}, {s(sDG)}, 9
    s_add_u32 {s(sTmp2)}, {s(sTmp2)}, {s(sT0)}
    s_add_u32 {s(sTmp)}, {s(sTmp)}, {s(sTmp2)}
    s_lshl_b32 {s(sTmp)}, {s(sTmp)}, 10
    v_lshl_add_u32 {v(vT0)}, {v(vLane)}, 4, {s(sTmp)}
    s_waitcnt lgkmcnt(0)
    """)
    A.srd_off(sHP, sWS, WS_HP, SZ_SD)
    for i in range(4): A(f"buffer_load_dwordx4 {v(HF+4*i,4)}, {v(vT0)}, {s(sHP,4)}, 0 offen offset:{i*1024}")
    A(f"s_movk_i32 {s(sTmp)}, 4096\nbuffer_load_dwordx4 {v(HF+16,4)}, {v(vT0)}, {s(sHP,4)}, {s(sTmp)} offen")
    A.srd_off(sSTt, sWS, WS_MS, S_*8)
    A(f"v_lshlrev_b32 {v(vT0)}, 3, {v(vT2)}\nbuffer_load_dwordx2 {v(vSig,2)}, {v(vT0)}, {s(sSTt,4)}, 0 offen")
    A.srd(sSTt, 46, S_*2)
    A(f"v_lshlrev_b32 {v(vT0)}, 1, {v(vT2)}\nbuffer_load_ushort {v(vB2)}, {v(vT0)}, {s(sSTt,4)}, 0 offen")
    A.srd(sOUT, 48, SZ_SD)
    A.srd_off(sPT, sWS, WS_PART, SZ_PART)
    A(f"""
    v_mul_u32_u24 {v(vOut)}, 1152, {v(vT2)}
    s_mul_i32 {s(sTmp)}, {s(sDG)}, 288
    s_lshl_b32 {s(sTmp2)}, {s(sT0)}, 5
    s_add_u32 {s(sTmp)}, {s(sTmp)}, {s(sTmp2)}
    v_add_u32 {v(vOut)}, {s(sTmp)}, {v(vOut)}
    v_lshl_add_u32 {v(vOut1)}, {v(vT1)}, 3, {v(vOut)}
    v_and_b32 {v(vT0)}, 1, {v(vT1)}
    v_lshl_add_u32 {v(vOut)}, {v(vT0)}, 5, {v(vOut)}
    v_lshrrev_b32 {v(vT0)}, 1, {v(vT1)}
    v_lshl_add_u32 {v(vOut)}, {v(vT0)}, 4, {v(vOut)}
    """)
    A(f"""
    s_lshl_b32 {s(sTmp)}, {s(sST)}, 2
    s_add_u32 {s(sTmp)}, {s(sTmp)}, {s(sDG)}
    s_mul_i32 {s(sTmp)}, {s(sTmp)}, 48
    s_add_u32 {s(sTmp)}, {s(sTmp)}, {s(sW)}
    s_mul_i32 {s(sTmp)}, {s(sTmp)}, {PART_REG}
    v_lshl_add_u32 {v(vPS)}, {v(vLane)}, 4, {s(sTmp)}
    s_mul_i32 {s(sTmp2)}, {s(sQ)}, {12*PART_REG}
    v_add_u32 {v(vPL)}, {s(sTmp2)}, {v(vPS)}
    """)
    A(f"""
    v_lshlrev_b32 {v(vRAb)}, 4, {v(vLane)}
    v_bfe_u32 {v(vT0)}, {v(vLane)}, 2, 2
    v_lshlrev_b32 {v(vT0)}, 6, {v(vT0)}
    v_lshl_add_u32 {v(vT0)}, {v(vT1)}, 10, {v(vT0)}
    v_and_b32 {v(vT2)}, 3, {v(vLane)}
    v_lshl_add_u32 {v(vT0)}, {v(vT2)}, 3, {v(vT0)}
    s_lshl_b32 {s(sTmp)}, {s(sW)}, 8
    v_add_u32 {v(vT0)}, {s(sTmp)}, {v(vT0)}
    v_and_b32 {v(vT2)}, 1, {v(vT1)}
    v_lshl_add_u32 {v(vRBb[0])}, {v(vT2)}, 5, {v(vT0)}
    v_xor_b32 {v(vRBb[1])}, 32, {v(vRBb[0])}
    v_mov_b32 {v(vRA)}, {v(vRAb)}
    v_mov_b32 {v(vRB[0])}, {v(vRBb[0])}
    v_mov_b32 {v(vRB[1])}, {v(vRBb[1])}
    s_mov_b32 {s(sRS)}, 0
    """)
    for i in range(8): A(f"v_mov_b32 {v(FB[1]+i)}, 0")
    for i in range(36): A(f"v_mov_b32 {v(FA[1]+i)}, 0")
    for i in range(72): A(f"v_mov_b32 {v(ACC+i)}, 0")
    P.stamp()
    def reads(buf, ks, first=False):
        B = [f"ds_read_b64_tr_b16 {v(FB[buf]+4*t+2*sec,2)}, {v(vRB[t])} offset:{SA+ks*8192+sec*4096}" for t in range(2) for sec in range(2)]
        L = [f"ds_read_b128 {v(FA[buf]+4*t,4)}, {v(vRA)} offset:{ks*9216+t*1024}" for t in range(9)]
        if skipA and not first: L = L[:9-skipA]
        if skipB and not first: B = []
        return B + L
    def mfmas(buf):
        return [f"v_mfma_f32_16x16x32_bf16 {v(acc(t,j),4)}, {v(FA[buf]+4*t,4)}, {v(FB[buf]+4*j,4)}, {v(acc(t,j),4)}" for t, j in ([(t, j) for t in range(9) for j in range(2)] if order == 'tj' else [(t, j ^ (t & 1)) for t in range(9) for j in range(2)] if order == 'snake' else [(t, j) for j in range(2) for t in range(9)])]
    def front(prim, fill, k):
        out = []; j = 0
        for p in prim:
            out.append(p)
            out += fill[j:j+k]; j += k
        return out + fill[j:]
    if skipA or skipB:
        A("s_barrier")
        for ins in reads(0, 0, True) + reads(1, 1, True): A(ins)
    Lk = A.label("k")
    A(f".p2align 6\n{Lk}:")
    A(f"s_waitcnt lgkmcnt(0)\ns_barrier")
    if prof:
        Lx = A.label("x")
        A(f"s_cmp_lg_u32 {s(sCnt)}, 0\ns_cbranch_scc1 {Lx}\ns_memtime {s(84,2)}\ns_memrealtime {s(88,2)}\n{Lx}:")
    for ins in front(mfmas(1), reads(0, 0), rd_per_gap): A(ins)
    A("s_waitcnt lgkmcnt(0)")
    tail = [f"s_add_u32 {s(sRS)}, {s(sRS)}, {SLOT}\ns_cmp_eq_u32 {s(sRS)}, {NS*SLOT}", f"s_cselect_b32 {s(sRS)}, 0, {s(sRS)}\ns_add_u32 {s(sCnt)}, {s(sCnt)}, 1",
            f"v_add_u32 {v(vRA)}, {s(sRS)}, {v(vRAb)}\nv_add_u32 {v(vRB[0])}, {s(sRS)}, {v(vRBb[0])}", f"v_add_u32 {v(vRB[1])}, {s(sRS)}, {v(vRBb[1])}\ns_cmp_lt_u32 {s(sCnt)}, {NST}"]
    for ins in front(mfmas(0), reads(1, 1) + tail, rd_per_gap): A(ins)
    A(f"s_cbranch_scc1 {Lk}")
    A("s_waitcnt lgkmcnt(0)")
    for ins in mfmas(1): A(ins)
    if prof: A(f"s_memtime {s(86,2)}\ns_memrealtime {s(90,2)}")
    P.stamp()
    PK = FA[0]
    IDN = FB[0]
    HT = FA[1]
    RX = FA[0]
    Ldone = A.label("done")
    Lq = [A.label(f"q{q}") for q in range(4)]
    A(f"""
    v_and_b32 {v(vT0)}, 15, {v(vLane)}
    v_lshrrev_b32 {v(vT1)}, 4, {v(vLane)}
    v_lshlrev_b32 {v(vT1)}, 2, {v(vT1)}
    v_sub_u32 {v(vT0)}, {v(vT0)}, {v(vT1)}
    v_mov_b32 {v(vT2)}, 0x3f80
    v_cmp_eq_u32 vcc, 0, {v(vT0)}
    v_cndmask_b32 {v(IDN+4)}, 0, {v(vT2)}, vcc
    v_cmp_eq_u32 vcc, 2, {v(vT0)}
    v_cndmask_b32 {v(IDN+5)}, 0, {v(vT2)}, vcc
    v_mov_b32 {v(vT2)}, 0x3f800000
    v_cmp_eq_u32 vcc, 1, {v(vT0)}
    v_cndmask_b32 {v(IDN+4)}, {v(IDN+4)}, {v(vT2)}, vcc
    v_cmp_eq_u32 vcc, 3, {v(vT0)}
    v_cndmask_b32 {v(IDN+5)}, {v(IDN+5)}, {v(vT2)}, vcc
    v_mov_b32 {v(IDN+2)}, 0
    v_mov_b32 {v(IDN+3)}, 0
    v_mov_b32 {v(IDN+6)}, 0
    v_mov_b32 {v(IDN+7)}, 0
    """)
    for q in range(1, 4): A(f"s_cmp_eq_u32 {s(sQ)}, {q}\ns_cbranch_scc1 {Lq[q]}")
    def tiles_of(q): return (q >> 1, list(range(0, 5)) if (q & 1) == 0 else list(range(5, 9)))
    for q in range(4):
        A(f"{Lq[q]}:")
        k = 0
        STG = FA[1] + 20
        for dest in [(q+1) & 3, (q+2) & 3, (q+3) & 3]:
            slot = (q - dest - 1) & 3
            js, ts = tiles_of(dest)
            so = (dest*3 + slot)*4*PART_REG
            A(f"s_mov_b32 {s(sTmp)}, {so}")
            for p in range(0, len(ts), 2):
                st = STG + (k & 3)*4; k += 1
                pr = ts[p:p+2]
                for i, t in enumerate(pr):
                    A(f"v_cvt_pk_bf16_f32 {v(st+2*i)}, {v(acc(t,js))}, {v(acc(t,js)+1)}")
                    A(f"v_cvt_pk_bf16_f32 {v(st+2*i+1)}, {v(acc(t,js)+2)}, {v(acc(t,js)+3)}")
                if no_xchg: continue
                if len(pr) == 2:
                    A(f"buffer_store_dwordx4 {v(st,4)}, {v(vPS)}, {s(sPT,4)}, {s(sTmp)} offen offset:{p*512} {st_flags}")
                else:
                    A(f"v_lshlrev_b32 {v(vT0)}, 3, {v(vLane)}\nv_sub_u32 {v(vT0)}, {v(vPS)}, {v(vT0)}")
                    A(f"buffer_store_dwordx2 {v(st,2)}, {v(vT0)}, {s(sPT,4)}, {s(sTmp)} offen offset:{p*512} {st_flags}")
        P.n = 3 if prof else 0
        P.stamp()
        js, ts = tiles_of(q)
        nt = len(ts)
        nst = 0 if no_xchg else sum((len(tiles_of(d)[1])+1)//2 for d in range(4) if d != q)
        A(f"s_waitcnt vmcnt({nst})")
        idr = IDN+4 if js == 0 else IDN+2
        for i in range(nt): A(f"v_mfma_f32_16x16x32_bf16 {v(HT+4*i,4)}, {v(HF+4*i,4)}, {v(idr,4)}, 0")
        A(f"v_lshlrev_b32 {v(vB2)}, 16, {v(vB2)}\nv_add_f32 {v(vB2)}, {v(vB2)}, {v(vSig)}")
        A(f"v_lshlrev_b32 {v(vT1)}, 3, {v(vLane)}\nv_sub_u32 {v(vT1)}, {v(vPL)}, {v(vT1)}")
        A(f"s_mov_b32 {s(sSpin)}, 0")
        Lpoll = A.label("poll"); Lgot = A.label("got")
        nreg = 2*nt
        if not no_xchg and light:
            Lp1 = A.label("p1"); Lg1 = A.label("g1")
            last = (2048 + 504) if nt == 5 else (1024 + 1020)
            A(f"""
            v_mul_u32_u24 {v(vT2)}, {4*PART_REG - 16}, {v(vLane)}
            v_add_u32 {v(vT2)}, {v(vT2)}, {v(vPL)}
            s_mov_b64 exec, 7
            {Lp1}:
            buffer_load_dword {v(vT0)}, {v(vT2)}, {s(sPT,4)}, 0 offen offset:{last} sc1
            s_add_u32 {s(sSpin)}, {s(sSpin)}, 1
            s_waitcnt vmcnt(0)
            v_cmp_eq_u32 vcc, -1, {v(vT0)}
            s_cmp_gt_u32 {s(sSpin)}, 0x40000
            s_cbranch_scc1 {Lg1}
            s_cbranch_vccz {Lg1}
            s_sleep {sleep}
            s_branch {Lp1}
            {Lg1}:
            s_mov_b64 exec, -1
            """)
            if prof: A(f"s_memrealtime {s(92,2)}")
        if not no_xchg:
            A(f"{Lpoll}:")
            for sl in range(3):
                A(f"s_mov_b32 {s(sTmp)}, {sl*4*PART_REG}")
                for p in range(0, nt, 2):
                    if p+1 < nt: A(f"buffer_load_dwordx4 {v(RX+sl*12+2*p,4)}, {v(vPL)}, {s(sPT,4)}, {s(sTmp)} offen offset:{p*512} sc1")
                    else: A(f"buffer_load_dwordx2 {v(RX+sl*12+2*p,2)}, {v(vT1)}, {s(sPT,4)}, {s(sTmp)} offen offset:{p*512} sc1")
            regs = [RX+sl*12+i for sl in range(3) for i in range(nreg)]
            A(f"s_add_u32 {s(sSpin)}, {s(sSpin)}, 1\ns_waitcnt vmcnt(0)")
            A(f"v_max3_u32 {v(vT0)}, {v(regs[0])}, {v(regs[1])}, {v(regs[2])}")
            rest = regs[3:]
            while len(rest) >= 2:
                A(f"v_max3_u32 {v(vT0)}, {v(vT0)}, {v(rest[0])}, {v(rest[1])}"); rest = rest[2:]
            if rest: A(f"v_max_u32 {v(vT0)}, {v(vT0)}, {v(rest[0])}")
            A(f"""
            v_cmp_eq_u32 vcc, -1, {v(vT0)}
            s_cmp_gt_u32 {s(sSpin)}, 0x40000
            s_cbranch_scc1 {Lgot}
            s_cbranch_vccnz {Lpoll}
            {Lgot}:
            """)
        else:
            for sl in range(3):
                for i in range(nreg): A(f"v_mov_b32 {v(RX+sl*12+i)}, 0")
        P.stamp()
        for i, t in enumerate(ts):
            a0 = acc(t, js)
            for r in range(4): A(f"v_fma_f32 {v(HT+4*i+r)}, {v(HT+4*i+r)}, {v(vSig+1)}, {v(vB2)}")
            for r in range(4): A(f"v_add_f32 {v(a0+r)}, {v(a0+r)}, {v(HT+4*i+r)}")
            for sl in range(3):
                for hf in range(2):
                    x = RX+sl*12+2*i+hf
                    A(f"v_lshlrev_b32 {v(vT0)}, 16, {v(x)}\nv_and_b32 {v(x)}, 0xffff0000, {v(x)}")
                    A(f"v_add_f32 {v(a0+2*hf)}, {v(a0+2*hf)}, {v(vT0)}\nv_add_f32 {v(a0+2*hf+1)}, {v(a0+2*hf+1)}, {v(x)}")
            A(f"v_cvt_pk_bf16_f32 {v(HF+2*i)}, {v(a0)}, {v(a0+1)}\nv_cvt_pk_bf16_f32 {v(HF+2*i+1)}, {v(a0+2)}, {v(a0+3)}")
            if i & 1:
                A(f"v_permlane16_swap_b32 {v(HF+2*i-2)}, {v(HF+2*i)}\nv_permlane16_swap_b32 {v(HF+2*i-1)}, {v(HF+2*i+1)}")
                A(f"buffer_store_dwordx4 {v(HF+2*i-2,4)}, {v(vOut)}, {s(sOUT,4)}, 0 offen offset:{(i-1)*32} {out_flags}")
            elif i == nt-1:
                A(f"buffer_store_dwordx2 {v(HF+2*i,2)}, {v(vOut1)}, {s(sOUT,4)}, 0 offen offset:{i*32} {out_flags}")
        if prof or q < 3: A(f"s_branch {Ldone}" if prof else "s_endpgm")
    A(f"{Ldone}:")
    if prof:
        A("s_waitcnt vmcnt(0)")
        P.stamp()
        A(f"s_waitcnt lgkmcnt(0)\ns_sub_u32 {s(60+2*P.n)}, s86, s84")
        P.n += 1
        A(f"s_sub_u32 {s(60+2*P.n)}, s90, s88")
        P.n += 1
        if light and not no_xchg: A(f"s_mov_b32 s62, s92")
        P.flush(sWS, FA[0], sW)
    A(f"{Lend}:\ns_endpgm")
    return A.text(), kernel_desc(name, R.hi), f"; @launch kernel={name} grid=({NWG},1,1) block=(512,1,1) lds={NS*SLOT}"

if __name__ == "__main__":
    open("k4_test.s", "w").write(assemble_file([gen_k4(prof=True)]))
```

```python
from common import *
from k4 import PART_REG
def svc_poison_part(A, Lend, NWG):
    n = 256 - NWG
    tot = 64*48*PART_REG
    per = (tot // 8192 + n - 1) // n
    L = A.label("ps")
    A(f"""
    s_cmp_ge_u32 s2, 256
    s_cbranch_scc1 {Lend}
    s_load_dwordx2 s[4:5], s[0:1], {KA_WS}
    s_sub_u32 s6, s2, {NWG}
    s_mul_i32 s6, s6, {per*8192}
    v_lshl_add_u32 v1, v0, 4, s6
    v_mov_b32 v4, -1
    v_mov_b32 v5, -1
    v_mov_b32 v6, -1
    v_mov_b32 v7, -1
    s_mov_b32 s7, 0
    s_waitcnt lgkmcnt(0)
    """)
    A.srd_off(8, 4, WS_PART, tot)
    A(f"""
    {L}:
    buffer_store_dwordx4 v[4:7], v1, s[8:11], 0 offen sc1
    v_add_u32 v1, 8192, v1
    s_add_u32 s7, s7, 1
    s_cmp_lt_u32 s7, {per}
    s_cbranch_scc1 {L}
    """)
    return 256
```

```python
import sys
from common import *
from k1 import gen_k1
from k2 import gen_k2
from k3 import gen_k3
from k4 import gen_k4
from svc import *
def build_all(prof=False):
    return assemble_file([gen_k1(prof=prof), gen_k2(prof=prof), gen_k3(prof=prof, svc=svc_poison_part), gen_k4(prof=prof)])
if __name__ == "__main__":
    open("all_prof.s", "w").write(build_all(True))
    open("all.s", "w").write(build_all(False))
```

```python
import sys
from common import *
from k1 import gen_k1
from k2 import gen_k2
from k3 import gen_k3
from k4 import gen_k4
from svc import *
def parts_all(prof=False):
    return [gen_k1(prof=prof), gen_k2(prof=prof), gen_k3(prof=prof, svc=svc_poison_part), gen_k4(prof=prof)]
def build_all(prof=False):
    return assemble_file(parts_all(prof))
if __name__ == "__main__":
    open("all_prof.s", "w").write(build_all(True))
    open("all.s", "w").write(build_all(False))
```

```python
from common import *
def gen_diag(kidx, wg, wave, stamp, name="diag_kernel"):
    A = Asm()
    A(kernel_header(name))
    Lend = A.label("end"); L = A.label("sp")
    A(f"s_cmp_ge_u32 s2, 1\ns_cbranch_scc1 {Lend}")
    A(f"s_memrealtime s[20:21]\ns_load_dwordx2 s[4:5], s[0:1], {KA_WS}\ns_waitcnt lgkmcnt(0)")
    A.srd(8, 4, WS_END)
    A(f"v_mov_b32 v1, {WS_PROF}\nbuffer_load_dword v2, v1, s[8:11], 0 offen sc1")
    if kidx is not None and kidx >= 0: A(f"v_mov_b32 v3, {WS_PROF + kidx*131072 + (wg*8+wave)*32 + stamp*4}\nbuffer_load_dword v4, v3, s[8:11], 0 offen sc1")
    A("s_waitcnt vmcnt(0)")
    if kidx is None: A("v_mov_b32 v4, v2")
    elif kidx < 0: A("v_mov_b32 v4, s20")
    A(f"""
    s_nop 1
    v_readfirstlane_b32 s6, v2
    v_readfirstlane_b32 s7, v4
    s_sub_u32 s7, s7, s6
    s_min_u32 s7, s7, 20000
    s_add_u32 s7, s7, 10000
    {L}:
    s_memrealtime s[12:13]
    s_waitcnt lgkmcnt(0)
    s_sub_u32 s12, s12, s6
    s_cmp_lt_u32 s12, s7
    s_cbranch_scc1 {L}
    {Lend}:
    s_endpgm
    """)
    return A.text(), kernel_desc(name, 24), f"; @launch kernel={name} grid=(1,1,1) block=(64,1,1) lds=0"
if __name__ == "__main__":
    from main import *
    for i, a in enumerate([(None,0,0,0), (1,0,0,0), (2,0,0,0), (3,0,0,0), (-1,0,0,0), (2,0,0,2)]):
        open(f"x/dg{i}.s", "w").write(assemble_file(parts_all(True) + [gen_diag(*a)]))
```

```python
from common import *
def gen_diag(kidx, nwg, wave, stamp, mx=True, name="diag_kernel"):
    A = Asm()
    A(kernel_header(name))
    Lend = A.label("end"); L = A.label("sp")
    A(f"s_cmp_ge_u32 s2, 1\ns_cbranch_scc1 {Lend}")
    A(f"s_memrealtime s[20:21]\ns_load_dwordx2 s[4:5], s[0:1], {KA_WS}\ns_waitcnt lgkmcnt(0)")
    A.srd(8, 4, WS_END)
    A(f"v_mov_b32 v1, {WS_PROF}\nbuffer_load_dword v2, v1, s[8:11], 0 offen sc1")
    if kidx is not None and kidx >= 0:
        for j in range(4):
            A(f"v_add_u32 v3, {64*j}, v0\nv_min_u32 v3, {nwg-1}, v3\nv_lshlrev_b32 v3, 8, v3\nv_add_u32 v3, {WS_PROF + kidx*131072 + wave*32 + stamp*4}, v3\nbuffer_load_dword v{4+j}, v3, s[8:11], 0 offen sc1")
    A("s_waitcnt vmcnt(0)")
    if kidx is None: A("v_mov_b32 v4, 0")
    elif kidx < 0: A("v_sub_u32 v4, s20, v2")
    else:
        op = "max" if mx else "min"
        for j in range(4): A(f"v_sub_u32 v{4+j}, v{4+j}, v2")
        A(f"v_{op}_u32 v4, v4, v5\nv_{op}_u32 v6, v6, v7\nv_{op}_u32 v4, v4, v6")
    A("s_nop 1\nv_readfirstlane_b32 s6, v2\nv_readfirstlane_b32 s7, v4")
    for l in range(1, 64): A(f"v_readlane_b32 s14, v4, {l}\ns_{'max' if mx else 'min'}_u32 s7, s7, s14")
    A(f"""
    s_min_u32 s7, s7, 20000
    s_add_u32 s7, s7, 10000
    {L}:
    s_memrealtime s[12:13]
    s_waitcnt lgkmcnt(0)
    s_sub_u32 s12, s12, s6
    s_cmp_lt_u32 s12, s7
    s_cbranch_scc1 {L}
    {Lend}:
    s_endpgm
    """)
    return A.text(), kernel_desc(name, 24), f"; @launch kernel={name} grid=(1,1,1) block=(64,1,1) lds=0"
if __name__ == "__main__":
    from main import *
    for i, a in enumerate([(0,200,0,5), (1,192,0,6), (2,216,0,4), (3,256,0,5), (2,216,0,2), (3,256,0,3)]):
        open(f"x/dg{i}.s", "w").write(assemble_file(parts_all(True) + [gen_diag(*a)]))
```
